```python
import torch

def _softmax(x, axis=-1):
    return torch.softmax(x, dim=axis)
def _gelu(x):
    return torch.nn.functional.gelu(x, approximate="tanh")
def _silu(x):
    return torch.nn.functional.silu(x)
def _sigmoid(x):
    return torch.sigmoid(x)
def _layernorm(x, axis=-1, eps=1e-5):
    m = x.mean(dim=axis, keepdim=True)
    v = x.var(dim=axis, keepdim=True, unbiased=False)
    return (x - m) / torch.sqrt(v + eps)
def _scatter_add(tgt, idx, src, axis=0):
    return tgt.clone().index_add_(axis, idx, src)
def _segment_sum(src, seg, n):
    out = torch.zeros((n,) + src.shape[1:], dtype=src.dtype)
    return out.index_add_(0, seg, src)
def _pad(x, pw):
    flat = tuple(v for pair in reversed(pw) for v in pair)
    return torch.nn.functional.pad(x, flat)

kernel_name = 'gated_mix__mha_block__mha_block__prompt'

def setup_inputs():

    _w = (lambda a: (lambda t: t.to(torch.bfloat16) if t.is_floating_point() else t)(torch.as_tensor(a)))
    def _A_setup():
        B, S, D, H = 1, 2048, 448, 16
        return {
            "x": _w((lambda *s: torch.randn(*s, dtype=torch.bfloat16) * 0.05)(B, S, D)),
            "wqkv": _w((lambda *s: torch.randn(*s, dtype=torch.bfloat16) * 0.8)(D, 3 * D)),
            "wo": _w((lambda *s: torch.randn(*s, dtype=torch.bfloat16) * 0.05)(D, D)),
        }
    _A_in = _A_setup()

    def _B_setup():
        B, S, D, H = 1, 2048, 448, 16
        return {
            "x": _w((lambda *s: torch.randn(*s, dtype=torch.bfloat16) * 0.05)(B, S, D)),
            "wqkv": _w((lambda *s: torch.randn(*s, dtype=torch.bfloat16) * 0.8)(D, 3 * D)),
            "wo": _w((lambda *s: torch.randn(*s, dtype=torch.bfloat16) * 0.05)(D, D)),
        }
    _B_in = _B_setup()

    return {
        "A_x": _A_in["x"],
        "A_wqkv": _A_in["wqkv"],
        "A_wo": _A_in["wo"],
        "B_x": _B_in["x"],
        "B_wqkv": _B_in["wqkv"],
        "B_wo": _B_in["wo"],
        "gate_w": _w((lambda *s: torch.randn(*s, dtype=torch.bfloat16) * 0.05)(448) * 16.0),
    }

def reference(A_x, A_wqkv, A_wo, B_x, B_wqkv, B_wo, gate_w):
    def _A_ref(x, wqkv, wo):
        B, S, D = x.shape
        H = 16
        Dh = D // H
        qkv = (lambda x, *d: x.permute(*d))((x @ wqkv).reshape(B, S, 3, H, Dh), 2, 0, 3, 1, 4)
        q, k, v = qkv[0], qkv[1], qkv[2]
        scores = torch.einsum("bhqd,bhkd->bhqk", q, k) * (Dh ** -0.5)
        p = _softmax(scores, axis=-1)
        o = torch.einsum("bhqk,bhkd->bhqd", p, v)
        return (lambda x, *d: x.permute(*d))(o, 0, 2, 1, 3).reshape(B, S, D) @ wo

    def _B_ref(x, wqkv, wo):
        B, S, D = x.shape
        H = 16
        Dh = D // H
        qkv = (lambda x, *d: x.permute(*d))((x @ wqkv).reshape(B, S, 3, H, Dh), 2, 0, 3, 1, 4)
        q, k, v = qkv[0], qkv[1], qkv[2]
        scores = torch.einsum("bhqd,bhkd->bhqk", q, k) * (Dh ** -0.5)
        p = _softmax(scores, axis=-1)
        o = torch.einsum("bhqk,bhkd->bhqd", p, v)
        return (lambda x, *d: x.permute(*d))(o, 0, 2, 1, 3).reshape(B, S, D) @ wo

    x = A_x
    g = _sigmoid((x * gate_w).sum(-1, keepdims=True))
    a = _A_ref(x, A_wqkv, A_wo)
    b = _B_ref(x, B_wqkv, B_wo)
    return g * a + (1 - g) * b
```

```python
import sys, math
NAME = "gated_mix__mha_block__mha_block__prompt"
S, D, H, DH = 2048, 448, 16, 28
WS_KV, WS_Q, WS_O, WS_G = 0, 8 << 20, 12 << 20, 16 << 20
WS_SIZE = 268435456
CSCALE = math.log2(math.e) / math.sqrt(DH)
import struct
def f2u(x): return struct.unpack("<I", struct.pack("<f", x))[0]

class E:
    def __init__(s): s.L = []
    def __call__(s, t):
        for l in t.strip("\n").split("\n"):
            s.L.append(l if l.rstrip().endswith(":") or l.startswith(".") else "    " + l.strip())
    def text(s): return "\n".join(s.L) + "\n"

def vr(a, n): return f"v[{a}:{a+n-1}]"
def srd(e, d, b, size):
    e(f"s_mov_b32 s{d}, s{b}\ns_mov_b32 s{d+1}, s{b+1}\ns_mov_b32 s{d+2}, {size}\ns_mov_b32 s{d+3}, 0x00020000")

def kernel_head(e, name):
    e(f".globl {name}\n.p2align 8\n.type {name},@function\n{name}:")
def kernel_desc(name, vgpr):
    return f""".p2align 6
.amdhsa_kernel {name}
  .amdhsa_next_free_vgpr {vgpr}
  .amdhsa_next_free_sgpr 102
  .amdhsa_accum_offset {vgpr}
  .amdhsa_group_segment_fixed_size 0
  .amdhsa_kernarg_size 80
  .amdhsa_user_sgpr_count 2
  .amdhsa_user_sgpr_kernarg_segment_ptr 1
  .amdhsa_system_sgpr_workgroup_id_x 1
  .amdhsa_float_denorm_mode_32 3
.end_amdhsa_kernel
"""

def decode_hb(e):
    e("""s_and_b32 s40, s2, 7
s_lshl_b32 s40, s40, 2
s_lshr_b32 s41, s2, 3
s_and_b32 s43, s41, 3
s_add_u32 s40, s40, s43
s_lshr_b32 s41, s41, 2
v_lshrrev_b32 v1, 6, v0
v_and_b32 v0, 63, v0
v_readfirstlane_b32 s42, v1""")

P1_WB = 0
P1_XB = 86016
P1_LDS = P1_XB + 65536
def p1(e, name):
    kernel_head(e, name)
    e(f"s_cmp_ge_u32 s2, 256\ns_cbranch_scc1 {name}_end")
    e("s_load_dwordx4 s[4:7], s[0:1], 0\ns_load_dwordx2 s[8:9], s[0:1], 32\ns_load_dwordx2 s[10:11], s[0:1], 48\ns_load_dwordx2 s[12:13], s[0:1], 72")
    decode_hb(e)
    e(f"""s_and_b32 s44, s40, 15            ; head
s_mul_i32 s45, s44, 56
v_lshrrev_b32 v2, 2, v0
v_mul_u32_u24 v2, 2688, v2
v_and_b32 v3, 3, v0
v_lshl_add_u32 v2, v3, 4, v2
v_add_u32 v2, s45, v2               ; v2 = W voffset
v_lshrrev_b32 v3, 3, v0
v_mul_u32_u24 v4, 896, v3
v_lshrrev_b32 v5, 4, v0             ; l/16
v_and_b32 v6, 7, v0
v_xor_b32 v7, v6, v5
v_lshl_add_u32 v3, v7, 4, v4
v_xor_b32 v7, 4, v7
v_lshl_add_u32 v4, v7, 4, v4
s_waitcnt lgkmcnt(0)
s_cmp_ge_u32 s40, 16
s_cselect_b32 s6, s8, s6
s_cselect_b32 s7, s9, s7""")
    srd(e, 16, 4, S*D*2)
    srd(e, 20, 6, D*3*D*2)
    srd(e, 24, 10, D*2)
    srd(e, 28, 12, WS_SIZE)
    e(f"""s_lshl_b32 s46, s41, 8
s_lshl_b32 s47, s42, 5
s_add_u32 s46, s46, s47
s_mul_i32 s47, s46, 896
s_lshl_b32 s48, s42, 13
s_add_u32 s48, s48, {P1_XB}""")
    order = []
    def wload(t):
        e(f"""s_add_u32 s50, s42, {8*t}
s_min_u32 s50, s50, 83
s_mul_i32 s51, s50, 0x5556
s_lshr_b32 s51, s51, 16             ; ks
s_mul_i32 s52, s51, 3
s_sub_u32 s52, s50, s52             ; p
s_mul_i32 s53, s52, 28672
s_lshl_b32 s54, s51, 10
s_add_u32 m0, s53, s54
s_mul_i32 s53, s51, {16*2688}
s_mul_i32 s54, s52, 896
s_add_u32 s53, s53, s54
buffer_load_dwordx4 v2, s[20:23], s53 offen lds""")
        order.append(("W", t))
    def xload(c):
        for u in range(4):
            e(f"""s_add_u32 m0, s48, {(c%2)*4096 + u*1024}
s_add_u32 s53, s47, {u*8*896 + c*128}
buffer_load_dwordx4 v{3 + (u%2)}, s[16:19], s53 offen lds""")
            order.append(("X", c))
    G = [[0,1],[2],[3,4],[5],[6,7],[8],[9,10]]
    def gload(c):
        if c < 7:
            for t in G[c]: wload(t)
    gload(0); xload(0); gload(1); xload(1); gload(2)
    e(f"""s_lshl_b32 s55, s41, 8
s_lshl_b32 s56, s40, 3
s_add_u32 s55, s55, s56
s_add_u32 s55, s55, s42
s_mul_i32 s56, s55, 896
v_lshlrev_b32 v8, 4, v0
v_mov_b32 v9, 0x7fff0000
v_cmp_gt_u32 vcc, 56, v0
s_nop 1
v_cndmask_b32 v9, v9, v8, vcc
buffer_load_dwordx4 v[240:243], v9, s[16:19], s56 offen
buffer_load_dwordx4 v[244:247], v9, s[24:27], 0 offen""")
    order.append(("g", 0)); order.append(("g", 1))
    gload(3)
    e(f"""v_and_b32 v8, 31, v0               ; row
v_lshrrev_b32 v9, 5, v0             ; h
v_lshrrev_b32 v10, 1, v8
v_and_b32 v10, 7, v10               ; key
v_lshlrev_b32 v11, 7, v8
v_add_u32 v11, s48, v11""")
    for ee in range(4):
        e(f"""v_add_u32 v16, {2*ee}, v9
v_xor_b32 v16, v16, v10
v_lshl_add_u32 v{12+ee}, v16, 4, v11""")
    e(f"""v_lshrrev_b32 v16, 2, v0
v_and_b32 v16, 3, v16               ; r
v_lshl_add_u32 v16, v9, 3, v16      ; 8h + r
v_lshlrev_b32 v16, 6, v16
v_lshrrev_b32 v17, 4, v0
v_and_b32 v17, 1, v17
v_lshl_add_u32 v16, v17, 5, v16
v_and_b32 v17, 3, v0
v_lshl_add_u32 v16, v17, 3, v16
v_add_u32 v17, 57344, v16           ; v17 = p=2""")
    AQ, AK, AV = 32, 48, 64
    XF = 80
    WF = 112
    def wread(ks):
        b = WF + (ks % 2) * 12
        for p in range(3):
            a = "v17" if p == 2 else "v16"
            off = (p % 2) * 28672 * (p < 2) + ks * 1024
            e(f"ds_read_b64_tr_b16 {vr(b+4*p, 2)}, {a} offset:{off}\nds_read_b64_tr_b16 {vr(b+4*p+2, 2)}, {a} offset:{off+256}")
    for c in range(7):
        need = max(i for i, o in enumerate(order) if (o == ("X", c)) or (o[0] == "W" and o[1] in G[c]))
        e(f"s_waitcnt vmcnt({len(order) - 1 - need})\ns_barrier")
        xb = XF + (c % 2) * 16
        for ee in range(4):
            e(f"ds_read_b128 {vr(xb+4*ee, 4)}, v{12+ee} offset:{(c%2)*4096}")
        wread(4*c)
        for ee in range(4):
            ks = 4*c + ee
            if ee < 3:
                wread(ks+1)
                e("s_waitcnt lgkmcnt(6)")
            else:
                e("s_waitcnt lgkmcnt(0)")
            if ee == 0:
                if c + 2 < 7: xload(c+2)
                gload(c+4)
            b = WF + (ks % 2) * 12
            x = vr(xb+4*ee, 4)
            z = ks == 0
            e(f"v_mfma_f32_32x32x16_bf16 {vr(AK,16)}, {vr(b+4,4)}, {x}, {'0' if z else vr(AK,16)}")
            e(f"v_mfma_f32_32x32x16_bf16 {vr(AV,16)}, {x}, {vr(b+8,4)}, {'0' if z else vr(AV,16)}")
            e(f"v_mfma_f32_32x32x16_bf16 {vr(AQ,16)}, {vr(b,4)}, {x}, {'0' if z else vr(AQ,16)}")
    e("v_mov_b32 v20, 0")
    for i in range(4):
        e(f"""v_lshlrev_b32 v18, 16, v{240+i}
v_lshlrev_b32 v19, 16, v{244+i}
v_fmac_f32 v20, v18, v19
v_and_b32 v18, 0xffff0000, v{240+i}
v_and_b32 v19, 0xffff0000, v{244+i}
v_fmac_f32 v20, v18, v19""")
    for m in ("row_shr:1", "row_shr:2", "row_shr:4", "row_shr:8"):
        e(f"s_nop 1\nv_add_f32_dpp v20, v20, v20 {m} row_mask:0xf bank_mask:0xf bound_ctrl:0")
    e("""s_nop 1
v_readlane_b32 s60, v20, 15
v_readlane_b32 s61, v20, 31
v_readlane_b32 s62, v20, 47
v_readlane_b32 s63, v20, 63
s_nop 1
v_mov_b32 v20, s60
v_add_f32 v20, s61, v20
v_add_f32 v20, s62, v20
v_add_f32 v20, s63, v20""")
    e(f"""v_mul_f32 v20, {hex(f2u(-math.log2(math.e)))}, v20
v_exp_f32 v20, v20
s_nop 0
v_add_f32 v20, 1.0, v20
v_rcp_f32 v20, v20
s_lshl_b32 s55, s55, 2
s_add_u32 s55, s55, {WS_G}
v_mov_b32 v21, 0
s_mov_b64 exec, 1
buffer_store_dword v20, v21, s[28:31], s55 offen
s_mov_b64 exec, -1""")
    e(f"""s_mov_b32 exec_lo, 0
s_nop 0""")
    for r in range(12, 16): e(f"v_mov_b32 v{AK+r}, 0")
    e("s_mov_b32 exec_lo, 0x10000000\ns_mov_b32 exec_hi, 0x10000000\ns_nop 0")
    for r in range(16): e(f"v_mov_b32 v{AV+r}, 1.0")
    e(f"s_mov_b64 exec, -1\ns_mov_b32 s57, {hex(f2u(CSCALE))}")
    for r in range(16): e(f"v_mul_f32 v{AQ+r}, s57, v{AQ+r}")
    for r in range(8):
        e(f"v_cvt_pk_bf16_f32 v{80+r}, v{AK+2*r}, v{AK+2*r+1}")
        e(f"v_cvt_pk_bf16_f32 v{88+r}, v{AV+2*r}, v{AV+2*r+1}")
        e(f"v_cvt_pk_bf16_f32 v{96+r}, v{AQ+2*r}, v{AQ+2*r+1}")
    e(f"""v_lshlrev_b32 v20, 4, v0            ; lane*16
v_and_b32 v21, 0x33, v0
v_and_b32 v22, 4, v0
v_lshl_or_b32 v21, v22, 1, v21
v_and_b32 v22, 8, v0
v_lshrrev_b32 v22, 1, v22
v_or_b32 v21, v21, v22
v_lshlrev_b32 v21, 4, v21           ; swap23(lane)*16
s_lshr_b32 s58, s46, 5              ; tile
s_lshl_b32 s59, s40, 6
s_add_u32 s58, s58, s59
s_lshl_b32 s59, s58, 12
s_lshl_b32 s58, s58, 11
s_add_u32 s58, s58, {WS_Q}
buffer_store_dwordx4 v[80:83], v21, s[28:31], s59 offen
buffer_store_dwordx4 v[84:87], v21, s[28:31], s59 offen offset:1024
buffer_store_dwordx4 v[88:91], v20, s[28:31], s59 offen offset:2048
buffer_store_dwordx4 v[92:95], v20, s[28:31], s59 offen offset:3072
buffer_store_dwordx4 v[96:99], v20, s[28:31], s58 offen
buffer_store_dwordx4 v[100:103], v20, s[28:31], s58 offen offset:1024
{name}_end:
s_endpgm""")

P2_LDS = 131072
def p2(e, name):
    kernel_head(e, name)
    e(f"s_cmp_ge_u32 s2, 256\ns_cbranch_scc1 {name}_end")
    e("s_load_dwordx2 s[12:13], s[0:1], 72")
    decode_hb(e)
    e("s_waitcnt lgkmcnt(0)")
    srd(e, 28, 12, WS_SIZE)
    X = [32, 48, 64, 80]; O = [96, 112]; Q = [128, 136]; KF = [144, 152]; VF = [160, 168]; IDX = 176
    e(f"""s_and_b32 s44, s42, 3              ; qp
s_lshr_b32 s45, s42, 2              ; kh
v_lshlrev_b32 v2, 4, v0             ; lane*16
s_lshl_b32 s46, s40, 18
s_lshl_b32 s47, s45, 14
s_lshl_b32 s48, s44, 10
s_add_u32 s47, s47, s48
s_add_u32 s49, s46, s47
s_lshl_b32 s50, s45, 14
v_add_u32 v3, s50, v2
v_add_u32 v4, 65536, v3             ; slots 2,3
s_lshl_b32 s51, s40, 6
s_lshl_b32 s52, s41, 3
s_add_u32 s51, s51, s52
s_lshl_b32 s52, s44, 1
s_add_u32 s51, s51, s52
s_lshl_b32 s51, s51, 11
s_add_u32 s51, s51, {WS_Q}""")
    for i in range(4):
        e(f"buffer_load_dwordx4 {vr(Q[0]+4*i,4)}, v2, s[28:31], s51 offen offset:{1024*i}")
    def dma(c):
        for u in range(4):
            e(f"""s_add_u32 m0, s47, {(c%4)*32768 + u*4096}
s_add_u32 s53, s49, {c*32768 + u*4096}
buffer_load_dwordx4 v2, s[28:31], s53 offen lds""")
    dma(0); dma(1); dma(2)
    e(f"v_mov_b32 v{IDX}, 0xdddddddd")
    for r in range(32): e(f"v_mov_b32 v{O[0]+r}, 0")
    def lds(t):
        c, u = t // 4, t % 4
        return ("v4" if (c % 4) >= 2 else "v3"), (c % 2) * 32768 + u * 4096
    def rdK(t):
        a, o = lds(t)
        e(f"ds_read_b128 {vr(KF[t%2],4)}, {a} offset:{o}\nds_read_b128 {vr(KF[t%2]+4,4)}, {a} offset:{o+1024}")
    def rdV(t):
        a, o = lds(t)
        e(f"ds_read_b128 {vr(VF[t%2],4)}, {a} offset:{o+2048}\nds_read_b128 {vr(VF[t%2]+4,4)}, {a} offset:{o+3072}")
    def Smm(n, i):
        t, a = n // 2, n % 2
        d = vr(X[n%4], 16)
        e(f"v_mfma_f32_32x32x16_bf16 {d}, {vr(KF[t%2]+4*i,4)}, {vr(Q[a]+4*i,4)}, {'0' if i == 0 else d}")
    def PV(n, i):
        t, a = n // 2, n % 2
        e(f"v_smfmac_f32_32x32x32_bf16 {vr(O[a],16)}, {vr(VF[t%2]+4*i,4)}, {vr(X[n%4]+8*i,8)}, v{IDX}")
    def ex(n, r0):
        for r in range(r0, r0+4): e(f"v_exp_f32 v{X[n%4]+r}, v{X[n%4]+r}")
    e("s_waitcnt vmcnt(8)\ns_barrier")
    rdK(0)
    e("s_waitcnt lgkmcnt(0)")
    Smm(0, 0); Smm(0, 1)
    e("s_nop 15")
    NT = 32
    for n in range(2*NT):
        t, a = n // 2, n % 2
        if a == 0:
            if t % 4 == 3 and t + 1 < NT:
                c1 = (t + 1) // 4
                e(f"s_waitcnt vmcnt({4 if c1 + 1 < 8 else 0})\ns_barrier")
                if c1 + 2 < 8: dma(c1 + 2)
            if t + 1 < NT: rdK(t+1)
            rdV(t)
        else:
            e("s_waitcnt lgkmcnt(0)")
        if n + 1 < 2*NT: Smm(n+1, 0)
        ex(n, 0)
        if n + 1 < 2*NT: Smm(n+1, 1)
        ex(n, 4)
        if n > 0: PV(n-1, 0)
        ex(n, 8)
        if n > 0: PV(n-1, 1)
        ex(n, 12)
    e("s_nop 1")
    PV(2*NT-1, 0); PV(2*NT-1, 1)
    e(f"""s_barrier
s_lshl_b32 s54, s42, 12
v_add_u32 v5, s54, v2
s_xor_b32 s54, s54, 16384
v_add_u32 v6, s54, v2
s_nop 7
s_cmp_eq_u32 s45, 0
s_cbranch_scc1 {name}_k0""")
    for i in range(4): e(f"ds_write_b128 v5, {vr(O[0]+4*i,4)} offset:{1024*i}")
    for r in range(16): e(f"v_mov_b32 v{X[0]+r}, v{O[1]+r}")
    for r in range(8): e(f"v_mov_b32 v{Q[0]+r}, v{Q[1]+r}")
    e(f"s_branch {name}_k1\n{name}_k0:")
    for i in range(4): e(f"ds_write_b128 v5, {vr(O[1]+4*i,4)} offset:{1024*i}")
    for r in range(16): e(f"v_mov_b32 v{X[0]+r}, v{O[0]+r}")
    e(f"{name}_k1:\ns_waitcnt lgkmcnt(0)\ns_barrier")
    for i in range(4): e(f"ds_read_b128 {vr(X[1]+4*i,4)}, v6 offset:{1024*i}")
    e("s_waitcnt lgkmcnt(0)")
    A = X[0]
    for r in range(16): e(f"v_add_f32 v{A+r}, v{A+r}, v{X[1]+r}")
    e(f"""v_mov_b32 v8, v{A+12}
v_mov_b32 v9, v{A+12}
s_nop 1
v_permlane32_swap_b32 v8, v9
v_max3_f32 v10, abs(v{A}), abs(v{A+1}), abs(v{A+2})""")
    e(f"v_add_f32 v10, abs(v{A}), abs(v{A+1})")
    for r in range(2, 12): e(f"v_add_f32 v10, abs(v{A+r}), v10")
    e(f"""s_mov_b32 exec_hi, 0
s_nop 0""")
    for r in range(12, 16): e(f"v_add_f32 v10, abs(v{A+r}), v10")
    e(f"""s_mov_b64 exec, -1
s_mov_b32 s56, {hex(f2u(2.0**-16))}
s_mov_b32 s57, {hex(f2u(2.0**64))}
s_mov_b32 s58, {hex(f2u(2.0**126))}
v_cmp_le_f32 s[60:61], s56, v9
v_cmp_ge_f32 s[62:63], s57, v9
v_cmp_ge_f32 s[64:65], s58, v10
s_and_b64 s[60:61], s[60:61], s[62:63]
s_and_b64 s[60:61], s[60:61], s[64:65]
s_cmp_eq_u64 s[60:61], exec
s_cbranch_scc0 {name}_fallback
{name}_fin:
v_rcp_f32 v9, v9
s_nop 0""")
    for r in range(16): e(f"v_mul_f32 v{A+r}, v9, v{A+r}")
    e("s_mov_b32 exec_lo, 0\ns_nop 0")
    for r in range(12, 16): e(f"v_mov_b32 v{A+r}, 0")
    e("s_mov_b64 exec, -1\ns_nop 0")
    for r in range(8): e(f"v_cvt_pk_bf16_f32 v{X[1]+r}, v{A+2*r}, v{A+2*r+1}")
    e(f"""s_lshl_b32 s52, s41, 3
s_lshl_b32 s53, s44, 1
s_add_u32 s52, s52, s53
s_add_u32 s52, s52, s45
s_lshl_b32 s52, s52, 5
s_add_u32 s52, s52, s40
s_lshl_b32 s52, s52, 11
s_add_u32 s52, s52, {WS_O}
buffer_store_dwordx4 {vr(X[1],4)}, v2, s[28:31], s52 offen
buffer_store_dwordx4 {vr(X[1]+4,4)}, v2, s[28:31], s52 offen offset:1024
{name}_end:
s_endpgm""")
    Sx, M = X[1], X[2]
    e(f"""{name}_fallback:
v_mov_b32 v10, 0xff800000
s_mov_b32 s56, s46
s_add_u32 s57, s46, 262144
{name}_fb1:
buffer_load_dwordx4 {vr(KF[0],4)}, v2, s[28:31], s56 offen
buffer_load_dwordx4 {vr(KF[0]+4,4)}, v2, s[28:31], s56 offen offset:1024
s_waitcnt vmcnt(0)
v_mfma_f32_32x32x16_bf16 {vr(Sx,16)}, {vr(KF[0],4)}, {vr(Q[0],4)}, 0
v_mfma_f32_32x32x16_bf16 {vr(Sx,16)}, {vr(KF[0]+4,4)}, {vr(Q[0]+4,4)}, {vr(Sx,16)}
s_nop 15""")
    for r in range(0, 16, 2): e(f"v_max3_f32 v10, v{Sx+r}, v{Sx+r+1}, v10")
    e(f"""s_add_u32 s56, s56, 4096
s_cmp_lt_u32 s56, s57
s_cbranch_scc1 {name}_fb1
v_mov_b32 v11, v10
s_nop 1
v_permlane32_swap_b32 v10, v11
s_nop 1
v_max_f32 v10, v10, v11""")
    for r in range(16): e(f"v_sub_f32 v{M+r}, 0, v10\nv_mov_b32 v{A+r}, 0")
    e(f"""s_mov_b32 s56, s46
{name}_fb2:
buffer_load_dwordx4 {vr(KF[0],4)}, v2, s[28:31], s56 offen
buffer_load_dwordx4 {vr(KF[0]+4,4)}, v2, s[28:31], s56 offen offset:1024
buffer_load_dwordx4 {vr(VF[0],4)}, v2, s[28:31], s56 offen offset:2048
buffer_load_dwordx4 {vr(VF[0]+4,4)}, v2, s[28:31], s56 offen offset:3072
s_waitcnt vmcnt(0)
v_mfma_f32_32x32x16_bf16 {vr(Sx,16)}, {vr(KF[0],4)}, {vr(Q[0],4)}, {vr(M,16)}
v_mfma_f32_32x32x16_bf16 {vr(Sx,16)}, {vr(KF[0]+4,4)}, {vr(Q[0]+4,4)}, {vr(Sx,16)}
s_nop 15""")
    for r in range(16): e(f"v_exp_f32 v{Sx+r}, v{Sx+r}")
    e(f"""s_nop 1
v_smfmac_f32_32x32x32_bf16 {vr(A,16)}, {vr(VF[0],4)}, {vr(Sx,8)}, v{IDX}
v_smfmac_f32_32x32x32_bf16 {vr(A,16)}, {vr(VF[0]+4,4)}, {vr(Sx+8,8)}, v{IDX}
s_add_u32 s56, s56, 4096
s_cmp_lt_u32 s56, s57
s_cbranch_scc1 {name}_fb2
s_nop 15
v_mov_b32 v8, v{A+12}
v_mov_b32 v9, v{A+12}
s_nop 1
v_permlane32_swap_b32 v8, v9
s_nop 1
s_branch {name}_fin""")

P3_LDS = 113 * 1024
def p3(e, name):
    kernel_head(e, name)
    e(f"s_cmp_ge_u32 s2, 224\ns_cbranch_scc1 {name}_end")
    e("s_load_dwordx2 s[4:5], s[0:1], 16\ns_load_dwordx2 s[6:7], s[0:1], 40\ns_load_dwordx2 s[8:9], s[0:1], 56\ns_load_dwordx2 s[12:13], s[0:1], 72")
    e("""s_and_b32 s40, s2, 7
s_lshr_b32 s41, s2, 3               ; j
s_mul_i32 s43, s41, 0x2493
s_lshr_b32 s43, s43, 16             ; j/7
s_mul_i32 s44, s43, 7
s_sub_u32 s41, s41, s44             ; ct
s_lshl_b32 s40, s40, 2
s_add_u32 s40, s40, s43
v_lshrrev_b32 v1, 6, v0
v_and_b32 v0, 63, v0
v_readfirstlane_b32 s42, v1
v_lshlrev_b32 v2, 4, v0
v_lshrrev_b32 v3, 3, v0
v_mul_u32_u24 v4, 896, v3
v_and_b32 v5, 7, v0
v_and_b32 v3, 2, v3
v_lshlrev_b32 v3, 1, v3
v_xor_b32 v5, v5, v3
v_lshl_add_u32 v3, v5, 4, v4
s_and_b32 s44, s42, 1               ; ri
s_lshr_b32 s45, s42, 1              ; kq
s_waitcnt lgkmcnt(0)
s_cmp_ge_u32 s42, 4
s_cselect_b32 s4, s6, s4
s_cselect_b32 s5, s7, s5""")
    srd(e, 16, 4, D*D*2)
    srd(e, 20, 8, S*D*2)
    srd(e, 28, 12, WS_SIZE)
    OF = 64
    e(f"""s_lshl_b32 s46, s40, 1
s_add_u32 s46, s46, s44
s_lshl_b32 s47, s46, 16
s_lshl_b32 s48, s45, 14
s_add_u32 s47, s47, s48
s_add_u32 s47, s47, {WS_O}
s_and_b32 s48, s42, 3
s_mul_i32 s49, s48, {14*8*896}
s_lshl_b32 s50, s41, 7
s_add_u32 s49, s49, s50
s_mul_i32 s50, s42, {14*1024}""")
    for u in range(16):
        if u < 14:
            e(f"""s_add_u32 m0, s50, {u*1024}
s_add_u32 s53, s49, {u*8*896}
buffer_load_dwordx4 v3, s[16:19], s53 offen lds""")
        e(f"s_add_u32 s53, s47, {(u//4)*4096}\nbuffer_load_dwordx4 {vr(OF+4*u,4)}, v2, s[28:31], s53 offen offset:{(u%4)*1024}")
    e(f"""v_mov_b32 v8, 0
v_mov_b32 v9, 0
v_lshlrev_b32 v10, 3, v0
v_add_u32 v10, {896*128}, v10
ds_write_b64 v10, v[8:9]
v_and_b32 v6, 31, v0
v_lshlrev_b32 v7, 2, v6
s_lshl_b32 s53, s46, 7
s_add_u32 s53, s53, {WS_G}
buffer_load_dword v12, v7, s[28:31], s53 offen
v_lshrrev_b32 v8, 5, v0             ; h
v_lshrrev_b32 v9, 2, v0
v_and_b32 v9, 3, v9                 ; r
v_lshl_add_u32 v10, v8, 2, v9       ; 4h + r
v_lshlrev_b32 v10, 7, v10
v_lshrrev_b32 v9, 1, v9
v_lshl_add_u32 v10, v9, 6, v10
v_lshrrev_b32 v9, 4, v0
v_and_b32 v9, 1, v9
v_lshl_add_u32 v10, v9, 5, v10
v_and_b32 v9, 3, v0
v_lshl_add_u32 v10, v9, 3, v10
s_mul_i32 s54, s45, 28672
v_add_u32 v10, s54, v10
v_xor_b32 v11, 64, v10              ; ci=1
s_waitcnt vmcnt(0) lgkmcnt(0)
s_barrier""")
    AC = [32, 48]; WF = 128
    def wread(f):
        b = WF + (f % 2) * 8
        k0 = 28 * (f // 2) + 16 * (f % 2)
        for ci in range(2):
            e(f"ds_read_b64_tr_b16 {vr(b+4*ci,2)}, v{10+ci} offset:{k0*128}\nds_read_b64_tr_b16 {vr(b+4*ci+2,2)}, v{10+ci} offset:{(k0+8)*128}")
    wread(0)
    for f in range(16):
        if f < 15:
            wread(f+1); e("s_waitcnt lgkmcnt(4)")
        else: e("s_waitcnt lgkmcnt(0)")
        b = WF + (f % 2) * 8
        for ci in range(2):
            e(f"v_mfma_f32_32x32x16_bf16 {vr(AC[ci],16)}, {vr(b+4*ci,4)}, {vr(OF+4*f,4)}, {'0' if f == 0 else vr(AC[ci],16)}")
    e(f"""v_sub_f32 v13, 1.0, v12
s_cmp_ge_u32 s42, 4
s_cselect_b64 vcc, -1, 0
s_barrier
v_cndmask_b32 v12, v12, v13, vcc
s_lshl_b32 s54, s42, 13
v_add_u32 v14, s54, v2
s_nop 7""")
    for r in range(32): e(f"v_mul_f32 v{32+r}, v12, v{32+r}")
    for pi in range(4):
        e(f"ds_write_b128 v14, {vr(32+8*pi,4)} offset:{pi*2048}\nds_write_b128 v14, {vr(36+8*pi,4)} offset:{pi*2048+1024}")
    e(f"""s_lshl_b32 s54, s44, 13
s_lshl_b32 s55, s45, 11
s_add_u32 s54, s54, s55
v_add_u32 v14, s54, v2
s_waitcnt lgkmcnt(0)
s_barrier""")
    for q in range(4):
        e(f"ds_read_b128 {vr(64+8*q,4)}, v14 offset:{q*16384}\nds_read_b128 {vr(68+8*q,4)}, v14 offset:{q*16384+1024}")
    e(f"""v_mul_u32_u24 v15, 896, v6
v_lshl_add_u32 v15, v8, 4, v15
s_mul_i32 s54, s46, {32*896}
s_lshl_b32 s55, s41, 7
s_add_u32 s54, s54, s55
s_lshl_b32 s55, s45, 5
s_add_u32 s54, s54, s55
s_waitcnt lgkmcnt(0)""")
    for r in range(8):
        e(f"v_add_f32 v{64+r}, v{64+r}, v{72+r}\nv_add_f32 v{80+r}, v{80+r}, v{88+r}")
    for r in range(8): e(f"v_add_f32 v{64+r}, v{64+r}, v{80+r}")
    for r in range(4): e(f"v_cvt_pk_bf16_f32 v{96+r}, v{64+2*r}, v{64+2*r+1}")
    e(f"""s_nop 1
v_permlane32_swap_b32 v96, v98
v_permlane32_swap_b32 v97, v99
buffer_store_dwordx4 v[96:99], v15, s[20:23], s54 offen
{name}_end:
s_endpgm""")

def main(out):
    e = E()
    hdr = open("cdna_kernels/" + NAME + ".s.ref").read().split("; Override launch")[0]
    e.L.append(hdr.rstrip("\n"))
    e.L.append(f"; @launch kernel=qkv_kernel grid=(256,1,1) block=(512,1,1) lds={P1_LDS}")
    e.L.append(f"; @launch kernel=attn_kernel grid=(256,1,1) block=(512,1,1) lds={P2_LDS}")
    e.L.append(f"; @launch kernel=oproj_kernel grid=(224,1,1) block=(512,1,1) lds={P3_LDS}")
    e('.amdgcn_target "amdgcn-amd-amdhsa--gfx950"\n.text')
    p1(e, "qkv_kernel"); p2(e, "attn_kernel"); p3(e, "oproj_kernel")
    t = e.text() + '.section .rodata,"a"\n' + kernel_desc("qkv_kernel", 256) + kernel_desc("attn_kernel", 256) + kernel_desc("oproj_kernel", 256)
    open(out, "w").write(t)
if __name__ == "__main__":
    main(sys.argv[1] if len(sys.argv) > 1 else "cdna_kernels/" + NAME + ".s")
```

```python
import sys, math, struct
NAME = "gated_mix__mha_block__mha_block__prompt"
S, D, H, DH = 2048, 448, 16, 28
WS_KV, WS_O, WS_G, WS_F1, WS_F2, WS_E = 0, 12 << 20, 16 << 20, 17 << 20, 18 << 20, 19 << 20
WS_SIZE = 268435456
CSCALE = math.log2(math.e) / math.sqrt(DH)
OOB = 0x7ff00000
SPIN = 1 << 17
OPT = dict(rot=1, pollt=1, wqe=1, pubt=3, kvsc=1)
def f2u(x): return struct.unpack("<I", struct.pack("<f", x))[0]

class E:
    def __init__(s): s.L = []; s.vm = []
    def __call__(s, t):
        for l in t.strip("\n").split("\n"):
            if not l.strip(): continue
            s.L.append(l if l.rstrip().endswith(":") or l.startswith(".") else "    " + l.strip())
    def vmop(s, tag, n=1): s.vm += [tag] * n
    def vmwait(s, *tags):
        need = max(i for i, o in enumerate(s.vm) if o in tags)
        n = len(s.vm) - 1 - need
        assert n < 64
        s(f"s_waitcnt vmcnt({n})")
    def text(s): return "\n".join(s.L) + "\n"

STAMP = False
def stamp(e, i, wait=False):
    if not STAMP: return
    e(f"s_memtime s[{68+4*i}:{69+4*i}]\ns_memrealtime s[{70+4*i}:{71+4*i}]")
    if wait: e("s_waitcnt lgkmcnt(0)")
def stamp_flush(e, kk, n):
    if not STAMP: return
    e(f"""s_waitcnt lgkmcnt(0)
s_lshl_b32 s66, s2, 3
s_add_u32 s66, s66, s42
s_lshl_b32 s66, s66, 6
s_add_u32 s66, s66, {(32<<20) + kk*256*8*64}
v_mov_b32 v250, 0
s_mov_b64 exec, 1""")
    for i in range(n):
        e(f"v_mov_b32 v252, s{68+4*i}\nv_mov_b32 v253, s{70+4*i}\nbuffer_store_dwordx2 v[252:253], v250, s[28:31], s66 offen offset:{8*i}\ns_nop 1")
        e.vmop("st")
    e("s_mov_b64 exec, -1")
def vr(a, n): return f"v[{a}:{a+n-1}]"
def srd(e, d, b, size):
    e(f"s_mov_b32 s{d}, s{b}\ns_mov_b32 s{d+1}, s{b+1}\ns_mov_b32 s{d+2}, {size}\ns_mov_b32 s{d+3}, 0x00020000")

LDS = 163840
XB = 57344
QX = 32768
def slot_base(i): return (4 - (7 - i) % 3) * 32768

def poll(e, label, vaddr, soff, nl):
    e(f"""s_mov_b32 s60, {SPIN}
s_mov_b64 exec, {hex((1 << nl) - 1)}
{label}:
buffer_load_dword v9, {vaddr}, s[28:31], {soff} offen sc1
s_sub_u32 s60, s60, 1
s_cbranch_scc1 {label}_x
s_waitcnt vmcnt(0)
v_cmp_ne_u32 vcc, s67, v9
s_cbranch_vccnz {label}
{label}_x:
s_mov_b64 exec, -1""")
    e.vm = []

def kernel(e, name):
    e(f".globl {name}\n.p2align 8\n.type {name},@function\n{name}:")
    e(f"s_cmp_ge_u32 s2, 256\ns_cbranch_scc1 L_end")
    stamp(e, 0)
    e("s_load_dwordx16 s[4:19], s[0:1], 0\ns_load_dwordx2 s[36:37], s[0:1], 72")
    e("""s_and_b32 s40, s2, 7
s_lshl_b32 s40, s40, 2
s_lshr_b32 s41, s2, 3
s_and_b32 s43, s41, 3
s_add_u32 s40, s40, s43             ; hh
s_lshr_b32 s41, s41, 2              ; b
v_lshrrev_b32 v1, 6, v0
v_and_b32 v0, 63, v0
v_readfirstlane_b32 s42, v1         ; wave""")
    e(f"""s_and_b32 s44, s40, 15            ; head
s_mul_i32 s45, s44, 56
v_lshrrev_b32 v2, 2, v0
v_mul_u32_u24 v2, 2688, v2
v_and_b32 v3, 3, v0
v_lshl_add_u32 v2, v3, 4, v2
v_add_u32 v2, s45, v2               ; v2 = W voffset
v_lshrrev_b32 v3, 3, v0
v_mul_u32_u24 v4, 896, v3
v_lshrrev_b32 v5, 4, v0
v_and_b32 v6, 7, v0
v_xor_b32 v7, v6, v5
v_lshl_add_u32 v3, v7, 4, v4
v_xor_b32 v7, 4, v7
v_lshl_add_u32 v4, v7, 4, v4
s_lshl_b32 s46, s41, 8
s_lshl_b32 s47, s42, 5
s_add_u32 s46, s46, s47
s_mul_i32 s47, s46, 896
s_lshl_b32 s48, s42, 12
s_add_u32 s48, s48, {XB}
s_and_b32 s49, s42, 3               ; e
s_mul_i32 s49, s49, {16*2688}
s_lshr_b32 s50, s42, 2              ; part (0=k,1=v)
s_mul_i32 s50, s50, 896
s_add_u32 s50, s50, s49
s_add_u32 s50, s50, 896
s_lshl_b32 s51, s42, 10             ; wave*1024""")
    if OPT["rot"]:
        e("""s_lshl_b32 s52, s43, 1
s_add_u32 s52, s52, s41
s_cmp_ge_u32 s52, 7
s_cselect_b32 s53, 7, 0
s_sub_u32 s52, s52, s53""")
    else:
        e("s_mov_b32 s52, 0")
    e("s_mov_b32 s39, s52                  ; c0")
    e("""s_waitcnt lgkmcnt(0)
s_cmp_ge_u32 s40, 16
s_cselect_b32 s6, s12, s6
s_cselect_b32 s7, s13, s7""")
    srd(e, 20, 4, S*D*2)
    srd(e, 24, 6, D*3*D*2)
    srd(e, 28, 36, WS_SIZE)
    srd(e, 32, 16, D*2)
    def load_step(i):
        e(f"""s_add_u32 m0, s51, {i*8192}
s_mul_i32 s53, s52, {64*2688}
s_add_u32 s53, s53, s50
buffer_load_dwordx4 v2, s[24:27], s53 offen lds
s_lshl_b32 s54, s52, 7
s_add_u32 s54, s54, s47""")
        e.vmop(("W", i))
        for u in range(4):
            e(f"""s_add_u32 m0, s48, {(i%3)*32768 + u*1024}
s_add_u32 s53, s54, {u*8*896}
buffer_load_dwordx4 v{3 + (u%2)}, s[20:23], s53 offen lds""")
            e.vmop(("X", i))
        e("""s_add_u32 s52, s52, 1
s_cmp_eq_u32 s52, 7
s_cselect_b32 s52, 0, s52""")
    def load_wq(t):
        e(f"""s_lshr_b32 s53, s42, 2
s_add_u32 s53, s53, s39
s_add_u32 s53, s53, {2*t}
s_cmp_ge_u32 s53, 7
s_cselect_b32 s54, 7, 0
s_sub_u32 s53, s53, s54
s_mul_i32 s53, s53, {64*2688}
s_add_u32 s53, s53, s49""")
        if t == 3: e(f"s_cmp_ge_u32 s42, 4\ns_cselect_b32 s53, {hex(OOB)}, s53")
        e(f"s_add_u32 m0, s51, {t*8192}\ns_nop 0\nbuffer_load_dwordx4 v2, s[24:27], s53 offen lds")
        e.vmop(("Wq", t))
    load_step(0); e("s_barrier"); load_step(1); e("s_barrier"); load_step(2)
    e(f"""v_mov_b32 v8, 0
s_mov_b32 s53, {WS_E}
buffer_load_dword v248, v8, s[28:31], s53 offen sc1
s_lshl_b32 s55, s41, 8
s_lshl_b32 s56, s40, 3
s_add_u32 s55, s55, s56
s_add_u32 s55, s55, s42
s_mul_i32 s56, s55, 896
v_lshlrev_b32 v8, 4, v0
v_mov_b32 v9, {hex(OOB)}
v_cmp_gt_u32 vcc, 56, v0
s_nop 1
v_cndmask_b32 v9, v9, v8, vcc
buffer_load_dwordx4 v[240:243], v9, s[20:23], s56 offen
buffer_load_dwordx4 v[244:247], v9, s[32:35], 0 offen""")
    e.vmop("g", 3)
    e(f"""v_and_b32 v8, 31, v0               ; row
v_lshrrev_b32 v9, 5, v0             ; h
v_lshrrev_b32 v10, 1, v8
v_and_b32 v10, 7, v10               ; key
v_lshlrev_b32 v11, 7, v8
v_add_u32 v11, s48, v11""")
    for ee in range(4):
        e(f"""v_add_u32 v16, {2*ee}, v9
v_xor_b32 v16, v16, v10
v_lshl_add_u32 v{12+ee}, v16, 4, v11
v_add_u32 v{24+ee}, 65536, v{12+ee}""")
    e(f"""v_lshrrev_b32 v16, 2, v0
v_and_b32 v16, 3, v16               ; r
v_lshl_add_u32 v16, v9, 3, v16      ; 8h + r
v_lshlrev_b32 v16, 6, v16
v_lshrrev_b32 v17, 4, v0
v_and_b32 v17, 1, v17
v_lshl_add_u32 v16, v17, 5, v16
v_and_b32 v17, 3, v0
v_lshl_add_u32 v16, v17, 3, v16""")
    AQ, AK, AV, WF, XF = 32, 48, 64, 80, 128
    def wread(ks):
        b = WF + (ks % 2) * 8
        for p in range(2):
            off = (ks // 4) * 8192 + p * 4096 + (ks % 4) * 1024
            e(f"ds_read_b64_tr_b16 {vr(b+4*p, 2)}, v16 offset:{off}\nds_read_b64_tr_b16 {vr(b+4*p+2, 2)}, v16 offset:{off+256}")
    for i in range(7):
        e.vmwait(("X", i), ("W", i))
        e("s_barrier")
        if i in (0, 3): stamp(e, 1 + i//3, True)
        xb = XF + i * 16
        for ee in range(4):
            e(f"ds_read_b128 {vr(xb+4*ee, 4)}, v{(24 if i % 3 == 2 else 12)+ee} offset:{(i%3%2)*32768}")
        wread(4*i)
        for ee in range(4):
            ks = 4*i + ee
            if ee < 3:
                wread(ks+1); e("s_waitcnt lgkmcnt(4)")
            else:
                e("s_waitcnt lgkmcnt(0)")
            if ee == 0:
                if i + 3 < 7: load_step(i+3)
                if i == 4:
                    load_wq(0); load_wq(1)
                    if OPT["wqe"]: load_wq(2); load_wq(3)
            b = WF + (ks % 2) * 8
            x = vr(xb+4*ee, 4)
            z = ks == 0
            e(f"v_mfma_f32_32x32x16_bf16 {vr(AK,16)}, {vr(b,4)}, {x}, {'0' if z else vr(AK,16)}")
            e(f"v_mfma_f32_32x32x16_bf16 {vr(AV,16)}, {x}, {vr(b+4,4)}, {'0' if z else vr(AV,16)}")
    stamp(e, 3)
    e("v_mov_b32 v20, 0")
    for i in range(4):
        e(f"""v_lshlrev_b32 v18, 16, v{240+i}
v_lshlrev_b32 v19, 16, v{244+i}
v_fmac_f32 v20, v18, v19
v_and_b32 v18, 0xffff0000, v{240+i}
v_and_b32 v19, 0xffff0000, v{244+i}
v_fmac_f32 v20, v18, v19""")
    e("s_mov_b32 exec_lo, 0\ns_nop 0")
    for r in range(12, 16): e(f"v_mov_b32 v{AK+r}, 0")
    e("s_mov_b64 exec, -1\ns_nop 0")
    for r in range(8):
        e(f"v_cvt_pk_bf16_f32 v{96+r}, v{AK+2*r}, v{AK+2*r+1}")
    for r in range(8):
        e(f"v_cvt_pk_bf16_f32 v{104+r}, v{AV+2*r}, v{AV+2*r+1}")
    e("s_mov_b32 exec_lo, 0xf0000000\ns_mov_b32 exec_hi, 0xf0000000\nv_mov_b32 v18, 0x3f803f80")
    e("s_mov_b32 exec_lo, 0xe0000000\ns_mov_b32 exec_hi, 0xe0000000\nv_mov_b32 v18, 0")
    e("s_mov_b32 exec_lo, 0xf0000000\ns_mov_b32 exec_hi, 0xf0000000")
    for r in range(8): e(f"v_mov_b32 v{104+r}, v18")
    e(f"""s_mov_b64 exec, -1
v_lshlrev_b32 v5, 4, v0             ; v5 = lane*16
v_and_b32 v21, 0x33, v0
v_and_b32 v22, 4, v0
v_lshl_or_b32 v21, v22, 1, v21
v_and_b32 v22, 8, v0
v_lshrrev_b32 v22, 1, v22
v_or_b32 v21, v21, v22
v_lshlrev_b32 v21, 4, v21           ; swap23(lane)*16
s_lshr_b32 s58, s46, 5              ; tile
s_lshl_b32 s59, s40, 6
s_add_u32 s58, s58, s59
s_lshl_b32 s59, s58, 12
buffer_store_dwordx4 v[96:99], v21, s[28:31], s59 offen sc1
buffer_store_dwordx4 v[100:103], v21, s[28:31], s59 offen offset:1024 sc1
buffer_store_dwordx4 v[104:107], v5, s[28:31], s59 offen offset:2048 sc1
buffer_store_dwordx4 v[108:111], v5, s[28:31], s59 offen offset:3072 sc1
s_lshl_b32 s58, s42, 12
s_add_u32 s58, s58, {slot_base(0)}
v_add_u32 v21, s58, v21
v_add_u32 v22, s58, v5
ds_write_b128 v21, v[96:99]
ds_write_b128 v21, v[100:103] offset:1024
ds_write_b128 v22, v[104:107] offset:2048
ds_write_b128 v22, v[108:111] offset:3072""")
    e.vmop("kv", 4)
    for m in ("row_shr:1", "row_shr:2", "row_shr:4", "row_shr:8"):
        e(f"s_nop 1\nv_add_f32_dpp v20, v20, v20 {m} row_mask:0xf bank_mask:0xf bound_ctrl:0")
    e(f"""s_nop 1
v_readlane_b32 s60, v20, 15
v_readlane_b32 s61, v20, 31
v_readlane_b32 s62, v20, 47
v_readlane_b32 s63, v20, 63
v_readfirstlane_b32 s67, v248
s_nop 1
v_mov_b32 v20, s60
v_add_f32 v20, s61, v20
v_add_f32 v20, s62, v20
v_add_f32 v20, s63, v20
v_mul_f32 v20, {hex(f2u(-math.log2(math.e)))}, v20
v_exp_f32 v20, v20
s_mul_i32 s67, s67, 0x41c64e6d
v_add_f32 v20, 1.0, v20
v_rcp_f32 v20, v20
s_add_u32 s67, s67, 0x3039
s_lshl_b32 s55, s55, 2
s_add_u32 s55, s55, {WS_G}
v_mov_b32 v21, 0
s_mov_b64 exec, 1
buffer_store_dword v20, v21, s[28:31], s55 offen sc1
s_mov_b64 exec, -1""")
    e.vmop("kv", 1)
    if not OPT["wqe"]: load_wq(2); load_wq(3)
    def qread(ks):
        b = WF + (ks % 4) * 4
        e(f"ds_read_b64_tr_b16 {vr(b, 2)}, v16 offset:{ks*1024}\nds_read_b64_tr_b16 {vr(b+2, 2)}, v16 offset:{ks*1024+256}")
    def publish():
        e(f"""s_cmp_lg_u32 s42, 0
s_cbranch_scc1 L_nopub
s_lshl_b32 s53, s40, 3
s_add_u32 s53, s53, s41
s_lshl_b32 s53, s53, 7
s_add_u32 s53, s53, {WS_F1}
v_mov_b32 v20, s67
s_mov_b64 exec, 1
buffer_store_dword v20, v21, s[28:31], s53 offen sc1
s_mov_b64 exec, -1
L_nopub:""")
    for t in range(4):
        if t == OPT["pubt"]: e.vmwait(("Wq", t), "kv")
        else: e.vmwait(("Wq", t))
        e("s_barrier")
        if t == OPT["pubt"]:
            publish()
        kss = list(range(8*t, min(8*t+8, 28)))
        qread(kss[0]); qread(kss[1])
        for j, ks in enumerate(kss):
            if j + 2 < len(kss):
                qread(ks+2); e("s_waitcnt lgkmcnt(4)")
            else:
                e(f"s_waitcnt lgkmcnt({2*(len(kss)-1-j)})")
            e(f"v_mfma_f32_32x32x16_bf16 {vr(AQ,16)}, {vr(WF+(ks%4)*4,4)}, {vr(XF+4*ks,4)}, {'0' if ks == 0 else vr(AQ,16)}")
        if t == OPT["pubt"]: e.vm = [x for x in e.vm if x == ("Wq", 3)]
    stamp(e, 4)
    X = [32, 48, 64, 80]; O = [96, 112]; Q = [128, 136]; KF = [144, 152]; VF = [160, 168]; IDX = 176
    e(f"""s_and_b32 s44, s42, 3              ; qp
s_lshr_b32 s45, s42, 2              ; kh
s_lshl_b32 s46, s40, 18
s_lshl_b32 s47, s45, 14
s_lshl_b32 s48, s44, 10
s_add_u32 s47, s47, s48
s_add_u32 s49, s46, s47
s_lshl_b32 s50, s45, 14
s_add_u32 s50, s50, 65536
v_add_u32 v3, s50, v5
v_add_u32 v4, 65536, v3             ; slot U4
s_lshl_b32 s53, s42, 11
s_add_u32 s53, s53, {QX}
v_add_u32 v6, s53, v5
s_lshl_b32 s53, s44, 12
s_add_u32 s53, s53, {QX}
v_add_u32 v7, s53, v5
v_lshlrev_b32 v8, 7, v0
s_mov_b32 s57, {hex(f2u(CSCALE))}""")
    e(f"""s_lshr_b32 s62, s2, 3
s_mul_i32 s61, s62, 0x2493
s_lshr_b32 s61, s61, 16
s_mul_i32 s63, s61, 7
s_sub_u32 s62, s62, s63
s_cmp_lt_u32 s2, 224
s_cselect_b32 s63, {D*D*2}, 0""")
    srd(e, 20, 8, "s63"); srd(e, 24, 14, "s63")
    e(f"""v_lshrrev_b32 v10, 3, v0
v_mul_u32_u24 v11, 896, v10
v_and_b32 v12, 7, v0
v_and_b32 v10, 2, v10
v_lshlrev_b32 v10, 1, v10
v_xor_b32 v12, v12, v10
v_lshl_add_u32 v2, v12, 4, v11
s_mul_i32 s63, s42, {8*896}
s_lshl_b32 s64, s62, 7
s_add_u32 s63, s63, s64""")
    for r in range(16): e(f"v_mul_f32 v{AQ+r}, s57, v{AQ+r}")
    for r in range(8): e(f"v_cvt_pk_bf16_f32 v{80+r}, v{AQ+2*r}, v{AQ+2*r+1}")
    e("s_mov_b32 exec_lo, 0\nv_mov_b32 v86, 0\nv_mov_b32 v87, 0\ns_mov_b64 exec, -1")
    e(f"ds_write_b128 v6, v[80:83]\nds_write_b128 v6, v[84:87] offset:1024\nv_mov_b32 v{IDX}, 0xdddddddd")
    for r in range(32): e(f"v_mov_b32 v{O[0]+r}, 0")
    if OPT["pubt"] == 4: e("s_waitcnt vmcnt(0)")
    e("s_waitcnt lgkmcnt(0)\ns_barrier")
    for i in range(4): e(f"ds_read_b128 {vr(Q[0]+4*i,4)}, v7 offset:{1024*i}")
    if OPT["pubt"] == 4: publish()
    def dma(c):
        e(f"s_add_u32 s54, s41, {c}\ns_and_b32 s54, s54, 7\ns_lshl_b32 s54, s54, 15\ns_add_u32 s54, s54, s49")
        for u in range(4):
            e(f"""s_add_u32 m0, s47, {slot_base(c) + u*4096}
s_add_u32 s53, s54, {u*4096}
buffer_load_dwordx4 v5, s[28:31], s53 offen {"sc1 " if OPT["kvsc"] else ""}lds""")
            e.vmop(("KV", c))
    def wo(t, touch=None):
        r = "s[20:23]" if t < 7 else "s[24:27]"
        if touch is None:
            e(f"s_add_u32 m0, s51, {t*8192}\ns_add_u32 s53, s63, {(t%7)*64*896}\nbuffer_load_dwordx4 v2, {r}, s53 offen lds")
        else:
            e(f"s_add_u32 s53, s63, {(t%7)*64*896}\nbuffer_load_dwordx4 {vr(touch,4)}, v2, {r}, s53 offen")
        e.vmop("wo")
    def lds(t):
        c, u = t // 4, t % 4
        sb = slot_base(c)
        return ("v4", u*4096) if sb == 131072 else ("v3", sb - 65536 + u * 4096)
    def rdK(t):
        a, o = lds(t)
        e(f"ds_read_b128 {vr(KF[t%2],4)}, {a} offset:{o}\nds_read_b128 {vr(KF[t%2]+4,4)}, {a} offset:{o+1024}")
    def rdV(t):
        a, o = lds(t)
        e(f"ds_read_b128 {vr(VF[t%2],4)}, {a} offset:{o+2048}\nds_read_b128 {vr(VF[t%2]+4,4)}, {a} offset:{o+3072}")
    def Smm(n, i):
        t, a = n // 2, n % 2
        d = vr(X[n%4], 16)
        e(f"v_mfma_f32_32x32x16_bf16 {d}, {vr(KF[t%2]+4*i,4)}, {vr(Q[a]+4*i,4)}, {'0' if i == 0 else d}")
    def PV(n, i):
        t, a = n // 2, n % 2
        e(f"v_smfmac_f32_32x32x32_bf16 {vr(O[a],16)}, {vr(VF[t%2]+4*i,4)}, {vr(X[n%4]+8*i,8)}, v{IDX}")
    def ex(n, r0):
        for r in range(r0, r0+4): e(f"v_exp_f32 v{X[n%4]+r}, v{X[n%4]+r}")
    rdK(0)
    e("s_waitcnt lgkmcnt(0)")
    Smm(0, 0); Smm(0, 1)
    e("s_nop 15")
    NT = 32
    for n in range(2*NT):
        t, a = n // 2, n % 2
        if a == 0:
            if t == OPT["pollt"]:
                e(f"s_lshl_b32 s53, s40, 10\ns_add_u32 s53, s53, {WS_F1}")
                poll(e, "L_poll1", "v8", "s53", 8)
                stamp(e, 5)
                dma(1); dma(2)
            if t % 4 == 3 and t + 1 < NT:
                c1 = (t + 1) // 4
                e.vmwait(("KV", c1))
                e("s_barrier")
                if c1 == 1: stamp(e, 6)
                if 2 <= c1 < 7: dma(c1 + 1)
                if c1 <= 4: wo(2*c1 - 2); wo(2*c1 - 1)
                if c1 in (5, 6):
                    for k in range(3): wo(8 + 3*(c1-5) + k, 180 + 4*k)
                if c1 == 7:
                    for k in range(8, 12): wo(k)
            if t + 1 < NT: rdK(t+1)
            rdV(t)
        else:
            e("s_waitcnt lgkmcnt(0)")
        if n + 1 < 2*NT: Smm(n+1, 0)
        ex(n, 0)
        if n + 1 < 2*NT: Smm(n+1, 1)
        ex(n, 4)
        if n > 0: PV(n-1, 0)
        ex(n, 8)
        if n > 0: PV(n-1, 1)
        ex(n, 12)
    e("s_nop 1")
    PV(2*NT-1, 0); PV(2*NT-1, 1)
    stamp(e, 7); stamp_flush(e, 0, 8); stamp(e, 0)
    e(f"""s_barrier
s_lshl_b32 s54, s42, 12
s_add_u32 s54, s54, 131072
v_add_u32 v6, s54, v5
s_xor_b32 s54, s54, 16384
v_add_u32 v7, s54, v5
s_nop 7
s_cmp_eq_u32 s45, 0
s_cbranch_scc1 L_k0""")
    for i in range(4): e(f"ds_write_b128 v6, {vr(O[0]+4*i,4)} offset:{1024*i}")
    for r in range(16): e(f"v_mov_b32 v{X[0]+r}, v{O[1]+r}")
    for r in range(8): e(f"v_mov_b32 v{Q[0]+r}, v{Q[1]+r}")
    e(f"s_branch L_k1\nL_k0:")
    for i in range(4): e(f"ds_write_b128 v6, {vr(O[1]+4*i,4)} offset:{1024*i}")
    for r in range(16): e(f"v_mov_b32 v{X[0]+r}, v{O[0]+r}")
    e(f"L_k1:\ns_waitcnt lgkmcnt(0)\ns_barrier")
    for i in range(4): e(f"ds_read_b128 {vr(X[1]+4*i,4)}, v7 offset:{1024*i}")
    e("s_waitcnt lgkmcnt(0)")
    A = X[0]
    for r in range(16): e(f"v_add_f32 v{A+r}, v{A+r}, v{X[1]+r}")
    e(f"""v_mov_b32 v10, v{A+12}
v_mov_b32 v9, v{A+12}
v_add_f32 v11, abs(v{A}), abs(v{A+1})
v_add_f32 v11, abs(v{A+2}), v11
v_permlane32_swap_b32 v10, v9""")
    for r in range(3, 16): e(f"v_add_f32 v11, abs(v{A+r}), v11")
    e(f"""s_mov_b32 s56, {hex(f2u(2.0**-16))}
s_mov_b32 s57, {hex(f2u(2.0**64))}
s_mov_b32 s58, {hex(f2u(2.0**126))}
v_cmp_le_f32 s[64:65], s56, v9
v_cmp_ge_f32 vcc, s57, v9
s_and_b64 s[64:65], s[64:65], vcc
v_cmp_ge_f32 vcc, s58, v11
s_and_b64 s[64:65], s[64:65], vcc
s_cmp_eq_u64 s[64:65], exec
s_cbranch_scc0 L_fallback
L_fin:
v_rcp_f32 v9, v9
s_nop 0""")
    for r in range(16): e(f"v_mul_f32 v{A+r}, v9, v{A+r}")
    for r in range(8): e(f"v_cvt_pk_bf16_f32 v{X[1]+r}, v{A+2*r}, v{A+2*r+1}")
    e(f"s_mov_b32 exec_lo, 0\nv_mov_b32 v{X[1]+6}, 0\nv_mov_b32 v{X[1]+7}, 0\ns_mov_b64 exec, -1")
    e(f"""s_lshl_b32 s52, s41, 3
s_lshl_b32 s53, s44, 1
s_add_u32 s52, s52, s53
s_add_u32 s52, s52, s45
s_lshl_b32 s52, s52, 5
s_add_u32 s52, s52, s40
s_lshl_b32 s53, s52, 11
s_add_u32 s53, s53, {WS_O}
buffer_store_dwordx4 {vr(X[1],4)}, v5, s[28:31], s53 offen sc1
buffer_store_dwordx4 {vr(X[1]+4,4)}, v5, s[28:31], s53 offen offset:1024 sc1""")
    e.vmop("o", 2)
    wo(12); wo(13)
    stamp(e, 1)
    e(f"""s_lshl_b32 s52, s52, 7
s_add_u32 s52, s52, {WS_F2}
v_mov_b32 v20, s67
v_mov_b32 v21, 0""")
    e.vmwait("o")
    e(f"""s_mov_b64 exec, 1
buffer_store_dword v20, v21, s[28:31], s52 offen sc1
s_mov_b64 exec, -1
s_cmp_ge_u32 s2, 224
s_cbranch_scc1 L_end""")
    stamp(e, 2)
    OF = 64
    srd(e, 32, 18, S*D*2)
    e(f"""s_and_b32 s44, s42, 1               ; ri
s_lshr_b32 s45, s42, 1              ; kq
s_and_b32 s46, s2, 7
s_lshl_b32 s46, s46, 3
s_lshl_b32 s47, s61, 1
s_add_u32 s46, s46, s47
s_add_u32 s46, s46, s44
s_lshl_b32 s47, s46, 2
s_add_u32 s47, s47, s45
s_lshl_b32 s48, s47, 10
s_add_u32 s48, s48, {WS_F2}
s_lshl_b32 s47, s47, 14
s_add_u32 s47, s47, {WS_O}
v_and_b32 v6, 31, v0
v_lshlrev_b32 v7, 2, v6
v_lshrrev_b32 v18, 5, v0            ; h
v_lshrrev_b32 v9, 2, v0
v_and_b32 v9, 3, v9                 ; r
v_lshlrev_b32 v12, 7, v9
v_lshrrev_b32 v9, 1, v9
v_lshl_add_u32 v12, v9, 6, v12
v_lshrrev_b32 v9, 4, v0
v_and_b32 v9, 1, v9
v_lshl_add_u32 v12, v9, 5, v12
v_and_b32 v9, 3, v0
v_lshl_add_u32 v12, v9, 3, v12
s_mul_i32 s54, s45, 28672
v_add_u32 v12, s54, v12
v_xor_b32 v13, 64, v12
v_lshl_add_u32 v10, v18, 9, v12
v_xor_b32 v11, 64, v10""")
    poll(e, "L_poll2", "v8", "s48", 8)
    stamp(e, 3)
    for u in range(16):
        if u % 4 == 0: e(f"s_add_u32 s53, s47, {(u//4)*4096}")
        e(f"buffer_load_dwordx4 {vr(OF+4*u,4)}, v5, s[28:31], s53 offen offset:{(u%4)*1024} sc1")
        e.vmop(("of", u))
    e("s_barrier")
    e(f"""s_lshl_b32 s53, s46, 7
s_add_u32 s53, s53, {WS_G}
buffer_load_dword v19, v7, s[28:31], s53 offen sc1""")
    e.vmop("g")
    AC = [32, 48]; WF = 128
    def wread3(f):
        b = WF + (f % 2) * 8
        k0 = 28 * (f // 2) + 16 * (f % 2)
        for ci in range(2):
            e(f"ds_read_b64_tr_b16 {vr(b+4*ci,2)}, v{10+ci} offset:{k0*128}\nds_read_b64_tr_b16 {vr(b+4*ci+2,2)}, v{(12 if f % 2 else 10)+ci} offset:{(k0+8)*128}")
    wread3(0)
    for f in range(16):
        if f < 15:
            wread3(f+1); e("s_waitcnt lgkmcnt(4)")
        else: e("s_waitcnt lgkmcnt(0)")
        e.vmwait(("of", f))
        b = WF + (f % 2) * 8
        for ci in range(2):
            e(f"v_mfma_f32_32x32x16_bf16 {vr(AC[ci],16)}, {vr(b+4*ci,4)}, {vr(OF+4*f,4)}, {'0' if f == 0 else vr(AC[ci],16)}")
    stamp(e, 4)
    e(f"""s_waitcnt vmcnt(0)
v_sub_f32 v13, 1.0, v19
s_cmp_ge_u32 s42, 4
s_cselect_b64 vcc, -1, 0
s_barrier
v_cndmask_b32 v12, v19, v13, vcc
s_lshl_b32 s54, s42, 13
v_add_u32 v14, s54, v5
s_nop 7""")
    for r in range(32): e(f"v_mul_f32 v{32+r}, v12, v{32+r}")
    for pi in range(4):
        e(f"ds_write_b128 v14, {vr(32+8*pi,4)} offset:{pi*2048}\nds_write_b128 v14, {vr(36+8*pi,4)} offset:{pi*2048+1024}")
    e(f"""s_lshl_b32 s54, s44, 13
s_lshl_b32 s55, s45, 11
s_add_u32 s54, s54, s55
v_add_u32 v14, s54, v5
s_waitcnt lgkmcnt(0)
s_barrier""")
    for q in range(4):
        e(f"ds_read_b128 {vr(64+8*q,4)}, v14 offset:{q*16384}\nds_read_b128 {vr(68+8*q,4)}, v14 offset:{q*16384+1024}")
    e(f"""v_mul_u32_u24 v15, 896, v6
v_lshl_add_u32 v15, v18, 4, v15
s_mul_i32 s54, s46, {32*896}
s_lshl_b32 s55, s62, 7
s_add_u32 s54, s54, s55
s_lshl_b32 s55, s45, 5
s_add_u32 s54, s54, s55
s_waitcnt lgkmcnt(0)""")
    for r in range(8):
        e(f"v_add_f32 v{64+r}, v{64+r}, v{72+r}\nv_add_f32 v{80+r}, v{80+r}, v{88+r}")
    for r in range(8): e(f"v_add_f32 v{64+r}, v{64+r}, v{80+r}")
    for r in range(4): e(f"v_cvt_pk_bf16_f32 v{96+r}, v{64+2*r}, v{64+2*r+1}")
    e(f"""s_nop 1
v_permlane32_swap_b32 v96, v98
v_permlane32_swap_b32 v97, v99
buffer_store_dwordx4 v[96:99], v15, s[32:35], s54 offen""")
    stamp(e, 5)
    if STAMP: e("s_waitcnt vmcnt(0)")
    stamp(e, 6); stamp_flush(e, 1, 7)
    e(f"""s_or_b32 s53, s2, s42
s_cmp_lg_u32 s53, 0
s_cbranch_scc1 L_end
s_mov_b32 s53, {WS_E}
s_mov_b64 exec, 1
buffer_store_dword v20, v21, s[28:31], s53 offen sc1
L_end:
s_endpgm""")
    Sx, M = X[1], X[2]
    e(f"""L_fallback:
v_mov_b32 v10, 0xff800000
s_mov_b32 s56, s46
s_add_u32 s57, s46, 262144
L_fb1:
buffer_load_dwordx4 {vr(KF[0],4)}, v5, s[28:31], s56 offen sc1
buffer_load_dwordx4 {vr(KF[0]+4,4)}, v5, s[28:31], s56 offen offset:1024 sc1
s_waitcnt vmcnt(0)
v_mfma_f32_32x32x16_bf16 {vr(Sx,16)}, {vr(KF[0],4)}, {vr(Q[0],4)}, 0
v_mfma_f32_32x32x16_bf16 {vr(Sx,16)}, {vr(KF[0]+4,4)}, {vr(Q[0]+4,4)}, {vr(Sx,16)}
s_nop 15""")
    for r in range(0, 16, 2): e(f"v_max3_f32 v10, v{Sx+r}, v{Sx+r+1}, v10")
    e(f"""s_add_u32 s56, s56, 4096
s_cmp_lt_u32 s56, s57
s_cbranch_scc1 L_fb1
v_mov_b32 v11, v10
s_nop 1
v_permlane32_swap_b32 v10, v11
s_nop 1
v_max_f32 v10, v10, v11""")
    for r in range(16): e(f"v_sub_f32 v{M+r}, 0, v10\nv_mov_b32 v{A+r}, 0")
    e(f"""s_mov_b32 s56, s46
L_fb2:
buffer_load_dwordx4 {vr(KF[0],4)}, v5, s[28:31], s56 offen sc1
buffer_load_dwordx4 {vr(KF[0]+4,4)}, v5, s[28:31], s56 offen offset:1024 sc1
buffer_load_dwordx4 {vr(VF[0],4)}, v5, s[28:31], s56 offen offset:2048 sc1
buffer_load_dwordx4 {vr(VF[0]+4,4)}, v5, s[28:31], s56 offen offset:3072 sc1
s_waitcnt vmcnt(0)
v_mfma_f32_32x32x16_bf16 {vr(Sx,16)}, {vr(KF[0],4)}, {vr(Q[0],4)}, {vr(M,16)}
v_mfma_f32_32x32x16_bf16 {vr(Sx,16)}, {vr(KF[0]+4,4)}, {vr(Q[0]+4,4)}, {vr(Sx,16)}
s_nop 15""")
    for r in range(16): e(f"v_exp_f32 v{Sx+r}, v{Sx+r}")
    e(f"""s_nop 1
v_smfmac_f32_32x32x32_bf16 {vr(A,16)}, {vr(VF[0],4)}, {vr(Sx,8)}, v{IDX}
v_smfmac_f32_32x32x32_bf16 {vr(A,16)}, {vr(VF[0]+4,4)}, {vr(Sx+8,8)}, v{IDX}
s_add_u32 s56, s56, 4096
s_cmp_lt_u32 s56, s57
s_cbranch_scc1 L_fb2
s_nop 15
v_mov_b32 v10, v{A+12}
v_mov_b32 v9, v{A+12}
s_nop 1
v_permlane32_swap_b32 v10, v9
s_nop 1
s_branch L_fin""")

def main(out):
    e = E()
    hdr = open("cdna_kernels/" + NAME + ".s.ref").read().split("; Override launch")[0]
    e.L.append(hdr.rstrip("\n"))
    e.L.append(f"; @launch grid=(256,1,1) block=(512,1,1) lds={LDS}")
    e('.amdgcn_target "amdgcn-amd-amdhsa--gfx950"\n.text')
    kn = NAME + "_kernel"
    kernel(e, kn)
    t = e.text() + f""".section .rodata,"a"
.p2align 6
.amdhsa_kernel {kn}
  .amdhsa_next_free_vgpr 256
  .amdhsa_next_free_sgpr 102
  .amdhsa_accum_offset 256
  .amdhsa_group_segment_fixed_size 0
  .amdhsa_kernarg_size 80
  .amdhsa_user_sgpr_count 2
  .amdhsa_user_sgpr_kernarg_segment_ptr 1
  .amdhsa_system_sgpr_workgroup_id_x 1
  .amdhsa_float_denorm_mode_32 3
.end_amdhsa_kernel
"""
    open(out, "w").write(t)
if __name__ == "__main__":
    args = sys.argv[1:]
    if "--stamp" in args: STAMP = True; args.remove("--stamp")
    for a in list(args):
        if "=" in a:
            k, v = a.split("="); OPT[k] = int(v); args.remove(a)
    main(args[0] if args else "cdna_kernels/" + NAME + ".s")
```

```python
import sys, math, struct
NAME = "gated_mix__mha_block__mha_block__prompt"
S, D, H, DH = 2048, 448, 16, 28
WS_KV, WS_O, WS_G, WS_F1, WS_F2, WS_E = 0, 12 << 20, 16 << 20, 17 << 20, 18 << 20, 19 << 20
WS_SIZE = 268435456
CSCALE = math.log2(math.e) / math.sqrt(DH)
OOB = 0x7ff00000
SPIN = 1 << 17
OPT = dict(rot=1, pollt=1, wqe=1, pubt=3, kvsc=1, dbg=-1)
def f2u(x): return struct.unpack("<I", struct.pack("<f", x))[0]

class E:
    def __init__(s): s.L = []; s.vm = []
    def __call__(s, t):
        for l in t.strip("\n").split("\n"):
            if not l.strip(): continue
            s.L.append(l if l.rstrip().endswith(":") or l.startswith(".") else "    " + l.strip())
    def vmop(s, tag, n=1): s.vm += [tag] * n
    def vmwait(s, *tags):
        need = max(i for i, o in enumerate(s.vm) if o in tags)
        n = len(s.vm) - 1 - need
        assert n < 64
        s(f"s_waitcnt vmcnt({n})")
    def text(s): return "\n".join(s.L) + "\n"

STAMP = False
def stamp(e, i, wait=False):
    if not STAMP: return
    e(f"s_memtime s[{68+4*i}:{69+4*i}]\ns_memrealtime s[{70+4*i}:{71+4*i}]")
    if wait: e("s_waitcnt lgkmcnt(0)")
def stamp_flush(e, kk, n):
    if not STAMP: return
    if OPT["dbg"] >= 0:
        e(f"""s_waitcnt lgkmcnt(0)
{"s_mov_b32 s38, s70" if kk == 0 else ""}
s_lshl_b32 s66, s2, 3
s_add_u32 s66, s66, s42
s_cmp_lg_u32 s66, {OPT["dbg"]*8}
s_cbranch_scc1 L_dbg{kk}
s_load_dwordx2 s[100:101], s[0:1], 64
v_mov_b32 v250, 0
s_mov_b64 exec, 1
s_waitcnt lgkmcnt(0)""")
        for i in range(n):
            e(f"s_sub_u32 s66, s{70+4*i}, s38\nv_mov_b32 v252, s66\nglobal_store_dword v250, v252, s[100:101] offset:{32*kk+4*i}\ns_nop 1")
        e(f"s_waitcnt vmcnt(0)\ns_mov_b64 exec, -1\nL_dbg{kk}:")
        return
    e(f"""s_waitcnt lgkmcnt(0)
s_lshl_b32 s66, s2, 3
s_add_u32 s66, s66, s42
s_lshl_b32 s66, s66, 6
s_add_u32 s66, s66, {(32<<20) + kk*256*8*64}
v_mov_b32 v250, 0
s_mov_b64 exec, 1""")
    for i in range(n):
        e(f"v_mov_b32 v252, s{68+4*i}\nv_mov_b32 v253, s{70+4*i}\nbuffer_store_dwordx2 v[252:253], v250, s[28:31], s66 offen offset:{8*i}\ns_nop 1")
        e.vmop("st")
    e("s_mov_b64 exec, -1")
def vr(a, n): return f"v[{a}:{a+n-1}]"
def srd(e, d, b, size):
    e(f"s_mov_b32 s{d}, s{b}\ns_mov_b32 s{d+1}, s{b+1}\ns_mov_b32 s{d+2}, {size}\ns_mov_b32 s{d+3}, 0x00020000")

LDS = 163840
XB = 57344
QX = 32768
def slot_base(i): return (4 - (7 - i) % 3) * 32768

def poll(e, label, vaddr, soff, nl):
    e(f"""s_mov_b32 s60, {SPIN}
s_mov_b64 exec, {hex((1 << nl) - 1)}
{label}:
buffer_load_dword v9, {vaddr}, s[28:31], {soff} offen sc1
s_sub_u32 s60, s60, 1
s_cbranch_scc1 {label}_x
s_waitcnt vmcnt(0)
v_cmp_ne_u32 vcc, s67, v9
s_cbranch_vccnz {label}
{label}_x:
s_mov_b64 exec, -1""")
    e.vm = []

def kernel(e, name):
    e(f".globl {name}\n.p2align 8\n.type {name},@function\n{name}:")
    e(f"s_cmp_ge_u32 s2, 256\ns_cbranch_scc1 L_end")
    stamp(e, 0)
    e("s_load_dwordx16 s[4:19], s[0:1], 0\ns_load_dwordx2 s[36:37], s[0:1], 72")
    e("""s_and_b32 s40, s2, 7
s_lshl_b32 s40, s40, 2
s_lshr_b32 s41, s2, 3
s_and_b32 s43, s41, 3
s_add_u32 s40, s40, s43             ; hh
s_lshr_b32 s41, s41, 2              ; b
v_lshrrev_b32 v1, 6, v0
v_and_b32 v0, 63, v0
v_readfirstlane_b32 s42, v1         ; wave""")
    e(f"""s_and_b32 s44, s40, 15            ; head
s_mul_i32 s45, s44, 56
v_lshrrev_b32 v2, 2, v0
v_mul_u32_u24 v2, 2688, v2
v_and_b32 v3, 3, v0
v_lshl_add_u32 v2, v3, 4, v2
v_add_u32 v2, s45, v2               ; v2 = W voffset
v_lshrrev_b32 v3, 3, v0
v_mul_u32_u24 v4, 896, v3
v_lshrrev_b32 v5, 4, v0
v_and_b32 v6, 7, v0
v_xor_b32 v7, v6, v5
v_lshl_add_u32 v3, v7, 4, v4
v_xor_b32 v7, 4, v7
v_lshl_add_u32 v4, v7, 4, v4
s_lshl_b32 s46, s41, 8
s_lshl_b32 s47, s42, 5
s_add_u32 s46, s46, s47
s_mul_i32 s47, s46, 896
s_lshl_b32 s48, s42, 12
s_add_u32 s48, s48, {XB}
s_and_b32 s49, s42, 3               ; e
s_mul_i32 s49, s49, {16*2688}
s_lshr_b32 s50, s42, 2              ; part (0=k,1=v)
s_mul_i32 s50, s50, 896
s_add_u32 s50, s50, s49
s_add_u32 s50, s50, 896
s_lshl_b32 s51, s42, 10             ; wave*1024""")
    if OPT["rot"]:
        e("""s_lshl_b32 s52, s43, 1
s_add_u32 s52, s52, s41
s_cmp_ge_u32 s52, 7
s_cselect_b32 s53, 7, 0
s_sub_u32 s52, s52, s53""")
    else:
        e("s_mov_b32 s52, 0")
    e("s_mov_b32 s39, s52                  ; c0")
    e("""s_waitcnt lgkmcnt(0)
s_cmp_ge_u32 s40, 16
s_cselect_b32 s6, s12, s6
s_cselect_b32 s7, s13, s7""")
    srd(e, 20, 4, S*D*2)
    srd(e, 24, 6, D*3*D*2)
    srd(e, 28, 36, WS_SIZE)
    srd(e, 32, 16, D*2)
    def load_step(i):
        e(f"""s_add_u32 m0, s51, {i*8192}
s_mul_i32 s53, s52, {64*2688}
s_add_u32 s53, s53, s50
buffer_load_dwordx4 v2, s[24:27], s53 offen lds
s_lshl_b32 s54, s52, 7
s_add_u32 s54, s54, s47""")
        e.vmop(("W", i))
        for u in range(4):
            e(f"""s_add_u32 m0, s48, {(i%3)*32768 + u*1024}
s_add_u32 s53, s54, {u*8*896}
buffer_load_dwordx4 v{3 + (u%2)}, s[20:23], s53 offen lds""")
            e.vmop(("X", i))
        e("""s_add_u32 s52, s52, 1
s_cmp_eq_u32 s52, 7
s_cselect_b32 s52, 0, s52""")
    def load_wq(t):
        e(f"""s_lshr_b32 s53, s42, 2
s_add_u32 s53, s53, s39
s_add_u32 s53, s53, {2*t}
s_cmp_ge_u32 s53, 7
s_cselect_b32 s54, 7, 0
s_sub_u32 s53, s53, s54
s_mul_i32 s53, s53, {64*2688}
s_add_u32 s53, s53, s49""")
        if t == 3: e(f"s_cmp_ge_u32 s42, 4\ns_cselect_b32 s53, {hex(OOB)}, s53")
        e(f"s_add_u32 m0, s51, {t*8192}\ns_nop 0\nbuffer_load_dwordx4 v2, s[24:27], s53 offen lds")
        e.vmop(("Wq", t))
    load_step(0); e("s_barrier"); load_step(1); e("s_barrier"); load_step(2)
    e(f"""v_mov_b32 v8, 0
s_mov_b32 s53, {WS_E}
buffer_load_dword v248, v8, s[28:31], s53 offen sc1
s_lshl_b32 s55, s41, 8
s_lshl_b32 s56, s40, 3
s_add_u32 s55, s55, s56
s_add_u32 s55, s55, s42
s_mul_i32 s56, s55, 896
v_lshlrev_b32 v8, 4, v0
v_mov_b32 v9, {hex(OOB)}
v_cmp_gt_u32 vcc, 56, v0
s_nop 1
v_cndmask_b32 v9, v9, v8, vcc
buffer_load_dwordx4 v[240:243], v9, s[20:23], s56 offen
buffer_load_dwordx4 v[244:247], v9, s[32:35], 0 offen""")
    e.vmop("g", 3)
    e(f"""v_and_b32 v8, 31, v0               ; row
v_lshrrev_b32 v9, 5, v0             ; h
v_lshrrev_b32 v10, 1, v8
v_and_b32 v10, 7, v10               ; key
v_lshlrev_b32 v11, 7, v8
v_add_u32 v11, s48, v11""")
    for ee in range(4):
        e(f"""v_add_u32 v16, {2*ee}, v9
v_xor_b32 v16, v16, v10
v_lshl_add_u32 v{12+ee}, v16, 4, v11
v_add_u32 v{24+ee}, 65536, v{12+ee}""")
    e(f"""v_lshrrev_b32 v16, 2, v0
v_and_b32 v16, 3, v16               ; r
v_lshl_add_u32 v16, v9, 3, v16      ; 8h + r
v_lshlrev_b32 v16, 6, v16
v_lshrrev_b32 v17, 4, v0
v_and_b32 v17, 1, v17
v_lshl_add_u32 v16, v17, 5, v16
v_and_b32 v17, 3, v0
v_lshl_add_u32 v16, v17, 3, v16""")
    AQ, AK, AV, WF, XF = 32, 48, 64, 80, 128
    def wread(ks):
        b = WF + (ks % 2) * 8
        for p in range(2):
            off = (ks // 4) * 8192 + p * 4096 + (ks % 4) * 1024
            e(f"ds_read_b64_tr_b16 {vr(b+4*p, 2)}, v16 offset:{off}\nds_read_b64_tr_b16 {vr(b+4*p+2, 2)}, v16 offset:{off+256}")
    for i in range(7):
        e.vmwait(("X", i), ("W", i))
        e("s_barrier")
        if i in (0, 3): stamp(e, 1 + i//3, True)
        xb = XF + i * 16
        for ee in range(4):
            e(f"ds_read_b128 {vr(xb+4*ee, 4)}, v{(24 if i % 3 == 2 else 12)+ee} offset:{(i%3%2)*32768}")
        wread(4*i)
        for ee in range(4):
            ks = 4*i + ee
            if ee < 3:
                wread(ks+1); e("s_waitcnt lgkmcnt(4)")
            else:
                e("s_waitcnt lgkmcnt(0)")
            if ee == 0:
                if i + 3 < 7: load_step(i+3)
                if i == 4:
                    load_wq(0); load_wq(1)
                    if OPT["wqe"]: load_wq(2); load_wq(3)
            b = WF + (ks % 2) * 8
            x = vr(xb+4*ee, 4)
            z = ks == 0
            e(f"v_mfma_f32_32x32x16_bf16 {vr(AK,16)}, {vr(b,4)}, {x}, {'0' if z else vr(AK,16)}")
            e(f"v_mfma_f32_32x32x16_bf16 {vr(AV,16)}, {x}, {vr(b+4,4)}, {'0' if z else vr(AV,16)}")
    stamp(e, 3)
    e("v_mov_b32 v20, 0")
    for i in range(4):
        e(f"""v_lshlrev_b32 v18, 16, v{240+i}
v_lshlrev_b32 v19, 16, v{244+i}
v_fmac_f32 v20, v18, v19
v_and_b32 v18, 0xffff0000, v{240+i}
v_and_b32 v19, 0xffff0000, v{244+i}
v_fmac_f32 v20, v18, v19""")
    e("s_mov_b32 exec_lo, 0\ns_nop 0")
    for r in range(12, 16): e(f"v_mov_b32 v{AK+r}, 0")
    e("s_mov_b64 exec, -1\ns_nop 0")
    for r in range(8):
        e(f"v_cvt_pk_bf16_f32 v{96+r}, v{AK+2*r}, v{AK+2*r+1}")
    for r in range(8):
        e(f"v_cvt_pk_bf16_f32 v{104+r}, v{AV+2*r}, v{AV+2*r+1}")
    e("s_mov_b32 exec_lo, 0xf0000000\ns_mov_b32 exec_hi, 0xf0000000\nv_mov_b32 v18, 0x3f803f80")
    e("s_mov_b32 exec_lo, 0xe0000000\ns_mov_b32 exec_hi, 0xe0000000\nv_mov_b32 v18, 0")
    e("s_mov_b32 exec_lo, 0xf0000000\ns_mov_b32 exec_hi, 0xf0000000")
    for r in range(8): e(f"v_mov_b32 v{104+r}, v18")
    e(f"""s_mov_b64 exec, -1
v_lshlrev_b32 v5, 4, v0             ; v5 = lane*16
v_and_b32 v21, 0x33, v0
v_and_b32 v22, 4, v0
v_lshl_or_b32 v21, v22, 1, v21
v_and_b32 v22, 8, v0
v_lshrrev_b32 v22, 1, v22
v_or_b32 v21, v21, v22
v_lshlrev_b32 v21, 4, v21           ; swap23(lane)*16
s_lshr_b32 s58, s46, 5              ; tile
s_lshl_b32 s59, s40, 6
s_add_u32 s58, s58, s59
s_lshl_b32 s59, s58, 12
buffer_store_dwordx4 v[96:99], v21, s[28:31], s59 offen sc1
buffer_store_dwordx4 v[100:103], v21, s[28:31], s59 offen offset:1024 sc1
buffer_store_dwordx4 v[104:107], v5, s[28:31], s59 offen offset:2048 sc1
buffer_store_dwordx4 v[108:111], v5, s[28:31], s59 offen offset:3072 sc1
s_lshl_b32 s58, s42, 12
s_add_u32 s58, s58, {slot_base(0)}
v_add_u32 v21, s58, v21
v_add_u32 v22, s58, v5
ds_write_b128 v21, v[96:99]
ds_write_b128 v21, v[100:103] offset:1024
ds_write_b128 v22, v[104:107] offset:2048
ds_write_b128 v22, v[108:111] offset:3072""")
    e.vmop("kv", 4)
    for m in ("row_shr:1", "row_shr:2", "row_shr:4", "row_shr:8"):
        e(f"s_nop 1\nv_add_f32_dpp v20, v20, v20 {m} row_mask:0xf bank_mask:0xf bound_ctrl:0")
    e(f"""s_nop 1
v_readlane_b32 s60, v20, 15
v_readlane_b32 s61, v20, 31
v_readlane_b32 s62, v20, 47
v_readlane_b32 s63, v20, 63
v_readfirstlane_b32 s67, v248
s_nop 1
v_mov_b32 v20, s60
v_add_f32 v20, s61, v20
v_add_f32 v20, s62, v20
v_add_f32 v20, s63, v20
v_mul_f32 v20, {hex(f2u(-math.log2(math.e)))}, v20
v_exp_f32 v20, v20
s_mul_i32 s67, s67, 0x41c64e6d
v_add_f32 v20, 1.0, v20
v_rcp_f32 v20, v20
s_add_u32 s67, s67, 0x3039
s_lshl_b32 s55, s55, 2
s_add_u32 s55, s55, {WS_G}
v_mov_b32 v21, 0
s_mov_b64 exec, 1
buffer_store_dword v20, v21, s[28:31], s55 offen sc1
s_mov_b64 exec, -1""")
    e.vmop("kv", 1)
    if not OPT["wqe"]: load_wq(2); load_wq(3)
    def qread(ks):
        b = WF + (ks % 4) * 4
        e(f"ds_read_b64_tr_b16 {vr(b, 2)}, v16 offset:{ks*1024}\nds_read_b64_tr_b16 {vr(b+2, 2)}, v16 offset:{ks*1024+256}")
    def publish():
        e(f"""s_cmp_lg_u32 s42, 0
s_cbranch_scc1 L_nopub
s_lshl_b32 s53, s40, 3
s_add_u32 s53, s53, s41
s_lshl_b32 s53, s53, 7
s_add_u32 s53, s53, {WS_F1}
v_mov_b32 v20, s67
s_mov_b64 exec, 1
buffer_store_dword v20, v21, s[28:31], s53 offen sc1
s_mov_b64 exec, -1
L_nopub:""")
    for t in range(4):
        if t == OPT["pubt"]: e.vmwait(("Wq", t), "kv")
        else: e.vmwait(("Wq", t))
        e("s_barrier")
        if t == OPT["pubt"]:
            publish()
        kss = list(range(8*t, min(8*t+8, 28)))
        qread(kss[0]); qread(kss[1])
        for j, ks in enumerate(kss):
            if j + 2 < len(kss):
                qread(ks+2); e("s_waitcnt lgkmcnt(4)")
            else:
                e(f"s_waitcnt lgkmcnt({2*(len(kss)-1-j)})")
            e(f"v_mfma_f32_32x32x16_bf16 {vr(AQ,16)}, {vr(WF+(ks%4)*4,4)}, {vr(XF+4*ks,4)}, {'0' if ks == 0 else vr(AQ,16)}")
        if t == OPT["pubt"]: e.vm = [x for x in e.vm if x == ("Wq", 3)]
    stamp(e, 4)
    X = [32, 48, 64, 80]; O = [96, 112]; Q = [128, 136]; KF = [144, 152]; VF = [160, 168]; IDX = 176
    e(f"""s_and_b32 s44, s42, 3              ; qp
s_lshr_b32 s45, s42, 2              ; kh
s_lshl_b32 s46, s40, 18
s_lshl_b32 s47, s45, 14
s_lshl_b32 s48, s44, 10
s_add_u32 s47, s47, s48
s_add_u32 s49, s46, s47
s_lshl_b32 s50, s45, 14
s_add_u32 s50, s50, 65536
v_add_u32 v3, s50, v5
v_add_u32 v4, 65536, v3             ; slot U4
s_lshl_b32 s53, s42, 11
s_add_u32 s53, s53, {QX}
v_add_u32 v6, s53, v5
s_lshl_b32 s53, s44, 12
s_add_u32 s53, s53, {QX}
v_add_u32 v7, s53, v5
v_lshlrev_b32 v8, 7, v0
s_mov_b32 s57, {hex(f2u(CSCALE))}""")
    e(f"""s_lshr_b32 s62, s2, 3
s_mul_i32 s61, s62, 0x2493
s_lshr_b32 s61, s61, 16
s_mul_i32 s63, s61, 7
s_sub_u32 s62, s62, s63
s_cmp_lt_u32 s2, 224
s_cselect_b32 s63, {D*D*2}, 0""")
    srd(e, 20, 8, "s63"); srd(e, 24, 14, "s63")
    e(f"""v_lshrrev_b32 v10, 3, v0
v_mul_u32_u24 v11, 896, v10
v_and_b32 v12, 7, v0
v_and_b32 v10, 2, v10
v_lshlrev_b32 v10, 1, v10
v_xor_b32 v12, v12, v10
v_lshl_add_u32 v2, v12, 4, v11
s_mul_i32 s63, s42, {8*896}
s_lshl_b32 s64, s62, 7
s_add_u32 s63, s63, s64""")
    for r in range(16): e(f"v_mul_f32 v{AQ+r}, s57, v{AQ+r}")
    for r in range(8): e(f"v_cvt_pk_bf16_f32 v{80+r}, v{AQ+2*r}, v{AQ+2*r+1}")
    e("s_mov_b32 exec_lo, 0\nv_mov_b32 v86, 0\nv_mov_b32 v87, 0\ns_mov_b64 exec, -1")
    e(f"ds_write_b128 v6, v[80:83]\nds_write_b128 v6, v[84:87] offset:1024\nv_mov_b32 v{IDX}, 0xdddddddd")
    for r in range(32): e(f"v_mov_b32 v{O[0]+r}, 0")
    if OPT["pubt"] == 4: e("s_waitcnt vmcnt(0)")
    e("s_waitcnt lgkmcnt(0)\ns_barrier")
    for i in range(4): e(f"ds_read_b128 {vr(Q[0]+4*i,4)}, v7 offset:{1024*i}")
    if OPT["pubt"] == 4: publish()
    def dma(c):
        e(f"s_add_u32 s54, s41, {c}\ns_and_b32 s54, s54, 7\ns_lshl_b32 s54, s54, 15\ns_add_u32 s54, s54, s49")
        for u in range(4):
            e(f"""s_add_u32 m0, s47, {slot_base(c) + u*4096}
s_add_u32 s53, s54, {u*4096}
buffer_load_dwordx4 v5, s[28:31], s53 offen {"sc1 " if OPT["kvsc"] else ""}lds""")
            e.vmop(("KV", c))
    def wo(t, touch=None):
        r = "s[20:23]" if t < 7 else "s[24:27]"
        if touch is None:
            e(f"s_add_u32 m0, s51, {t*8192}\ns_add_u32 s53, s63, {(t%7)*64*896}\nbuffer_load_dwordx4 v2, {r}, s53 offen lds")
        else:
            e(f"s_add_u32 s53, s63, {(t%7)*64*896}\nbuffer_load_dwordx4 {vr(touch,4)}, v2, {r}, s53 offen")
        e.vmop("wo")
    def lds(t):
        c, u = t // 4, t % 4
        sb = slot_base(c)
        return ("v4", u*4096) if sb == 131072 else ("v3", sb - 65536 + u * 4096)
    def rdK(t):
        a, o = lds(t)
        e(f"ds_read_b128 {vr(KF[t%2],4)}, {a} offset:{o}\nds_read_b128 {vr(KF[t%2]+4,4)}, {a} offset:{o+1024}")
    def rdV(t):
        a, o = lds(t)
        e(f"ds_read_b128 {vr(VF[t%2],4)}, {a} offset:{o+2048}\nds_read_b128 {vr(VF[t%2]+4,4)}, {a} offset:{o+3072}")
    def Smm(n, i):
        t, a = n // 2, n % 2
        d = vr(X[n%4], 16)
        e(f"v_mfma_f32_32x32x16_bf16 {d}, {vr(KF[t%2]+4*i,4)}, {vr(Q[a]+4*i,4)}, {'0' if i == 0 else d}")
    def PV(n, i):
        t, a = n // 2, n % 2
        e(f"v_smfmac_f32_32x32x32_bf16 {vr(O[a],16)}, {vr(VF[t%2]+4*i,4)}, {vr(X[n%4]+8*i,8)}, v{IDX}")
    def ex(n, r0):
        for r in range(r0, r0+4): e(f"v_exp_f32 v{X[n%4]+r}, v{X[n%4]+r}")
    rdK(0)
    e("s_waitcnt lgkmcnt(0)")
    Smm(0, 0); Smm(0, 1)
    e("s_nop 15")
    NT = 32
    for n in range(2*NT):
        t, a = n // 2, n % 2
        if a == 0:
            if t == OPT["pollt"]:
                e(f"s_lshl_b32 s53, s40, 10\ns_add_u32 s53, s53, {WS_F1}")
                poll(e, "L_poll1", "v8", "s53", 8)
                stamp(e, 5)
                dma(1); dma(2)
            if t % 4 == 3 and t + 1 < NT:
                c1 = (t + 1) // 4
                e.vmwait(("KV", c1))
                e("s_barrier")
                if c1 == 1: stamp(e, 6)
                if 2 <= c1 < 7: dma(c1 + 1)
                if c1 <= 4: wo(2*c1 - 2); wo(2*c1 - 1)
                if c1 in (5, 6):
                    for k in range(3): wo(8 + 3*(c1-5) + k, 180 + 4*k)
                if c1 == 7:
                    for k in range(8, 12): wo(k)
            if t + 1 < NT: rdK(t+1)
            rdV(t)
        else:
            e("s_waitcnt lgkmcnt(0)")
        if n + 1 < 2*NT: Smm(n+1, 0)
        ex(n, 0)
        if n + 1 < 2*NT: Smm(n+1, 1)
        ex(n, 4)
        if n > 0: PV(n-1, 0)
        ex(n, 8)
        if n > 0: PV(n-1, 1)
        ex(n, 12)
    e("s_nop 1")
    PV(2*NT-1, 0); PV(2*NT-1, 1)
    stamp(e, 7); stamp_flush(e, 0, 8); stamp(e, 0)
    e(f"""s_barrier
s_lshl_b32 s54, s42, 12
s_add_u32 s54, s54, 131072
v_add_u32 v6, s54, v5
s_xor_b32 s54, s54, 16384
v_add_u32 v7, s54, v5
s_nop 7
s_cmp_eq_u32 s45, 0
s_cbranch_scc1 L_k0""")
    for i in range(4): e(f"ds_write_b128 v6, {vr(O[0]+4*i,4)} offset:{1024*i}")
    for r in range(16): e(f"v_mov_b32 v{X[0]+r}, v{O[1]+r}")
    for r in range(8): e(f"v_mov_b32 v{Q[0]+r}, v{Q[1]+r}")
    e(f"s_branch L_k1\nL_k0:")
    for i in range(4): e(f"ds_write_b128 v6, {vr(O[1]+4*i,4)} offset:{1024*i}")
    for r in range(16): e(f"v_mov_b32 v{X[0]+r}, v{O[0]+r}")
    e(f"L_k1:\ns_waitcnt lgkmcnt(0)\ns_barrier")
    for i in range(4): e(f"ds_read_b128 {vr(X[1]+4*i,4)}, v7 offset:{1024*i}")
    e("s_waitcnt lgkmcnt(0)")
    A = X[0]
    for r in range(16): e(f"v_add_f32 v{A+r}, v{A+r}, v{X[1]+r}")
    e(f"""v_mov_b32 v10, v{A+12}
v_mov_b32 v9, v{A+12}
v_add_f32 v11, abs(v{A}), abs(v{A+1})
v_add_f32 v11, abs(v{A+2}), v11
v_permlane32_swap_b32 v10, v9""")
    for r in range(3, 16): e(f"v_add_f32 v11, abs(v{A+r}), v11")
    e(f"""s_mov_b32 s56, {hex(f2u(2.0**-16))}
s_mov_b32 s57, {hex(f2u(2.0**64))}
s_mov_b32 s58, {hex(f2u(2.0**126))}
v_cmp_le_f32 s[64:65], s56, v9
v_cmp_ge_f32 vcc, s57, v9
s_and_b64 s[64:65], s[64:65], vcc
v_cmp_ge_f32 vcc, s58, v11
s_and_b64 s[64:65], s[64:65], vcc
s_cmp_eq_u64 s[64:65], exec
s_cbranch_scc0 L_fallback
L_fin:
v_rcp_f32 v9, v9
s_nop 0""")
    for r in range(16): e(f"v_mul_f32 v{A+r}, v9, v{A+r}")
    for r in range(8): e(f"v_cvt_pk_bf16_f32 v{X[1]+r}, v{A+2*r}, v{A+2*r+1}")
    e(f"s_mov_b32 exec_lo, 0\nv_mov_b32 v{X[1]+6}, 0\nv_mov_b32 v{X[1]+7}, 0\ns_mov_b64 exec, -1")
    e(f"""s_lshl_b32 s52, s41, 3
s_lshl_b32 s53, s44, 1
s_add_u32 s52, s52, s53
s_add_u32 s52, s52, s45
s_lshl_b32 s52, s52, 5
s_add_u32 s52, s52, s40
s_lshl_b32 s53, s52, 11
s_add_u32 s53, s53, {WS_O}
buffer_store_dwordx4 {vr(X[1],4)}, v5, s[28:31], s53 offen sc1
buffer_store_dwordx4 {vr(X[1]+4,4)}, v5, s[28:31], s53 offen offset:1024 sc1""")
    e.vmop("o", 2)
    wo(12); wo(13)
    stamp(e, 1)
    e(f"""s_lshl_b32 s52, s52, 7
s_add_u32 s52, s52, {WS_F2}
v_mov_b32 v20, s67
v_mov_b32 v21, 0""")
    e.vmwait("o")
    e(f"""s_mov_b64 exec, 1
buffer_store_dword v20, v21, s[28:31], s52 offen sc1
s_mov_b64 exec, -1
s_cmp_ge_u32 s2, 224
s_cbranch_scc1 L_end""")
    stamp(e, 2)
    OF = 64
    srd(e, 32, 18, S*D*2)
    e(f"""s_and_b32 s44, s42, 1               ; ri
s_lshr_b32 s45, s42, 1              ; kq
s_and_b32 s46, s2, 7
s_lshl_b32 s46, s46, 3
s_lshl_b32 s47, s61, 1
s_add_u32 s46, s46, s47
s_add_u32 s46, s46, s44
s_lshl_b32 s47, s46, 2
s_add_u32 s47, s47, s45
s_lshl_b32 s48, s47, 10
s_add_u32 s48, s48, {WS_F2}
s_lshl_b32 s47, s47, 14
s_add_u32 s47, s47, {WS_O}
v_and_b32 v6, 31, v0
v_lshlrev_b32 v7, 2, v6
v_lshrrev_b32 v18, 5, v0            ; h
v_lshrrev_b32 v9, 2, v0
v_and_b32 v9, 3, v9                 ; r
v_lshlrev_b32 v12, 7, v9
v_lshrrev_b32 v9, 1, v9
v_lshl_add_u32 v12, v9, 6, v12
v_lshrrev_b32 v9, 4, v0
v_and_b32 v9, 1, v9
v_lshl_add_u32 v12, v9, 5, v12
v_and_b32 v9, 3, v0
v_lshl_add_u32 v12, v9, 3, v12
s_mul_i32 s54, s45, 28672
v_add_u32 v12, s54, v12
v_xor_b32 v13, 64, v12
v_lshl_add_u32 v10, v18, 9, v12
v_xor_b32 v11, 64, v10""")
    poll(e, "L_poll2", "v8", "s48", 8)
    stamp(e, 3)
    for u in range(16):
        if u % 4 == 0: e(f"s_add_u32 s53, s47, {(u//4)*4096}")
        e(f"buffer_load_dwordx4 {vr(OF+4*u,4)}, v5, s[28:31], s53 offen offset:{(u%4)*1024} sc1")
        e.vmop(("of", u))
    e("s_barrier")
    e(f"""s_lshl_b32 s53, s46, 7
s_add_u32 s53, s53, {WS_G}
buffer_load_dword v19, v7, s[28:31], s53 offen sc1""")
    e.vmop("g")
    AC = [32, 48]; WF = 128
    def wread3(f):
        b = WF + (f % 2) * 8
        k0 = 28 * (f // 2) + 16 * (f % 2)
        for ci in range(2):
            e(f"ds_read_b64_tr_b16 {vr(b+4*ci,2)}, v{10+ci} offset:{k0*128}\nds_read_b64_tr_b16 {vr(b+4*ci+2,2)}, v{(12 if f % 2 else 10)+ci} offset:{(k0+8)*128}")
    wread3(0)
    for f in range(16):
        if f < 15:
            wread3(f+1); e("s_waitcnt lgkmcnt(4)")
        else: e("s_waitcnt lgkmcnt(0)")
        e.vmwait(("of", f))
        b = WF + (f % 2) * 8
        for ci in range(2):
            e(f"v_mfma_f32_32x32x16_bf16 {vr(AC[ci],16)}, {vr(b+4*ci,4)}, {vr(OF+4*f,4)}, {'0' if f == 0 else vr(AC[ci],16)}")
    stamp(e, 4)
    e(f"""s_waitcnt vmcnt(0)
v_sub_f32 v13, 1.0, v19
s_cmp_ge_u32 s42, 4
s_cselect_b64 vcc, -1, 0
s_barrier
v_cndmask_b32 v12, v19, v13, vcc
s_lshl_b32 s54, s42, 13
v_add_u32 v14, s54, v5
s_nop 7""")
    for r in range(32): e(f"v_mul_f32 v{32+r}, v12, v{32+r}")
    for pi in range(4):
        e(f"ds_write_b128 v14, {vr(32+8*pi,4)} offset:{pi*2048}\nds_write_b128 v14, {vr(36+8*pi,4)} offset:{pi*2048+1024}")
    e(f"""s_lshl_b32 s54, s44, 13
s_lshl_b32 s55, s45, 11
s_add_u32 s54, s54, s55
v_add_u32 v14, s54, v5
s_waitcnt lgkmcnt(0)
s_barrier""")
    for q in range(4):
        e(f"ds_read_b128 {vr(64+8*q,4)}, v14 offset:{q*16384}\nds_read_b128 {vr(68+8*q,4)}, v14 offset:{q*16384+1024}")
    e(f"""v_mul_u32_u24 v15, 896, v6
v_lshl_add_u32 v15, v18, 4, v15
s_mul_i32 s54, s46, {32*896}
s_lshl_b32 s55, s62, 7
s_add_u32 s54, s54, s55
s_lshl_b32 s55, s45, 5
s_add_u32 s54, s54, s55
s_waitcnt lgkmcnt(0)""")
    for r in range(8):
        e(f"v_add_f32 v{64+r}, v{64+r}, v{72+r}\nv_add_f32 v{80+r}, v{80+r}, v{88+r}")
    for r in range(8): e(f"v_add_f32 v{64+r}, v{64+r}, v{80+r}")
    for r in range(4): e(f"v_cvt_pk_bf16_f32 v{96+r}, v{64+2*r}, v{64+2*r+1}")
    e(f"""s_nop 1
v_permlane32_swap_b32 v96, v98
v_permlane32_swap_b32 v97, v99
buffer_store_dwordx4 v[96:99], v15, s[32:35], s54 offen""")
    stamp(e, 5)
    if STAMP: e("s_waitcnt vmcnt(0)")
    stamp(e, 6); stamp_flush(e, 1, 7)
    e(f"""s_or_b32 s53, s2, s42
s_cmp_lg_u32 s53, 0
s_cbranch_scc1 L_end
s_mov_b32 s53, {WS_E}
s_mov_b64 exec, 1
buffer_store_dword v20, v21, s[28:31], s53 offen sc1
L_end:
s_endpgm""")
    Sx, M = X[1], X[2]
    e(f"""L_fallback:
v_mov_b32 v10, 0xff800000
s_mov_b32 s56, s46
s_add_u32 s57, s46, 262144
L_fb1:
buffer_load_dwordx4 {vr(KF[0],4)}, v5, s[28:31], s56 offen sc1
buffer_load_dwordx4 {vr(KF[0]+4,4)}, v5, s[28:31], s56 offen offset:1024 sc1
s_waitcnt vmcnt(0)
v_mfma_f32_32x32x16_bf16 {vr(Sx,16)}, {vr(KF[0],4)}, {vr(Q[0],4)}, 0
v_mfma_f32_32x32x16_bf16 {vr(Sx,16)}, {vr(KF[0]+4,4)}, {vr(Q[0]+4,4)}, {vr(Sx,16)}
s_nop 15""")
    for r in range(0, 16, 2): e(f"v_max3_f32 v10, v{Sx+r}, v{Sx+r+1}, v10")
    e(f"""s_add_u32 s56, s56, 4096
s_cmp_lt_u32 s56, s57
s_cbranch_scc1 L_fb1
v_mov_b32 v11, v10
s_nop 1
v_permlane32_swap_b32 v10, v11
s_nop 1
v_max_f32 v10, v10, v11""")
    for r in range(16): e(f"v_sub_f32 v{M+r}, 0, v10\nv_mov_b32 v{A+r}, 0")
    e(f"""s_mov_b32 s56, s46
L_fb2:
buffer_load_dwordx4 {vr(KF[0],4)}, v5, s[28:31], s56 offen sc1
buffer_load_dwordx4 {vr(KF[0]+4,4)}, v5, s[28:31], s56 offen offset:1024 sc1
buffer_load_dwordx4 {vr(VF[0],4)}, v5, s[28:31], s56 offen offset:2048 sc1
buffer_load_dwordx4 {vr(VF[0]+4,4)}, v5, s[28:31], s56 offen offset:3072 sc1
s_waitcnt vmcnt(0)
v_mfma_f32_32x32x16_bf16 {vr(Sx,16)}, {vr(KF[0],4)}, {vr(Q[0],4)}, {vr(M,16)}
v_mfma_f32_32x32x16_bf16 {vr(Sx,16)}, {vr(KF[0]+4,4)}, {vr(Q[0]+4,4)}, {vr(Sx,16)}
s_nop 15""")
    for r in range(16): e(f"v_exp_f32 v{Sx+r}, v{Sx+r}")
    e(f"""s_nop 1
v_smfmac_f32_32x32x32_bf16 {vr(A,16)}, {vr(VF[0],4)}, {vr(Sx,8)}, v{IDX}
v_smfmac_f32_32x32x32_bf16 {vr(A,16)}, {vr(VF[0]+4,4)}, {vr(Sx+8,8)}, v{IDX}
s_add_u32 s56, s56, 4096
s_cmp_lt_u32 s56, s57
s_cbranch_scc1 L_fb2
s_nop 15
v_mov_b32 v10, v{A+12}
v_mov_b32 v9, v{A+12}
s_nop 1
v_permlane32_swap_b32 v10, v9
s_nop 1
s_branch L_fin""")

def main(out):
    e = E()
    hdr = open("cdna_kernels/" + NAME + ".s.ref").read().split("; Override launch")[0]
    e.L.append(hdr.rstrip("\n"))
    e.L.append(f"; @launch grid=(256,1,1) block=(512,1,1) lds={LDS}")
    e('.amdgcn_target "amdgcn-amd-amdhsa--gfx950"\n.text')
    kn = NAME + "_kernel"
    kernel(e, kn)
    t = e.text() + f""".section .rodata,"a"
.p2align 6
.amdhsa_kernel {kn}
  .amdhsa_next_free_vgpr 256
  .amdhsa_next_free_sgpr 102
  .amdhsa_accum_offset 256
  .amdhsa_group_segment_fixed_size 0
  .amdhsa_kernarg_size 80
  .amdhsa_user_sgpr_count 2
  .amdhsa_user_sgpr_kernarg_segment_ptr 1
  .amdhsa_system_sgpr_workgroup_id_x 1
  .amdhsa_float_denorm_mode_32 3
.end_amdhsa_kernel
"""
    open(out, "w").write(t)
if __name__ == "__main__":
    args = sys.argv[1:]
    if "--stamp" in args: STAMP = True; args.remove("--stamp")
    for a in list(args):
        if "=" in a:
            k, v = a.split("="); OPT[k] = int(v); args.remove(a)
    main(args[0] if args else "cdna_kernels/" + NAME + ".s")
```

```python
import sys, math, struct
NAME = "gated_mix__mha_block__mha_block__prompt"
S, D, H, DH = 2048, 448, 16, 28
WS_KV, WS_O, WS_G, WS_F1, WS_F2, WS_E = 0, 8 << 20, (12 << 20) + (320 << 10), (12 << 20) + (256 << 10), 12 << 20, (12 << 20) + (384 << 10)
WS_SIZE = 268435456
CSCALE = math.log2(math.e) / math.sqrt(DH)
OOB = 0x7ff00000
SPIN = 1 << 17
OPT = dict(rot=1, pollt=1, wqe=1, pubt=3, kvsc=1, touch=1, dbg=-1)
def f2u(x): return struct.unpack("<I", struct.pack("<f", x))[0]

class E:
    def __init__(s): s.L = []; s.vm = []
    def __call__(s, t):
        for l in t.strip("\n").split("\n"):
            if not l.strip(): continue
            s.L.append(l if l.rstrip().endswith(":") or l.startswith(".") else "    " + l.strip())
    def vmop(s, tag, n=1): s.vm += [tag] * n
    def vmwait(s, *tags):
        need = max(i for i, o in enumerate(s.vm) if o in tags)
        n = len(s.vm) - 1 - need
        assert n < 64
        s(f"s_waitcnt vmcnt({n})")
    def text(s): return "\n".join(s.L) + "\n"

STAMP = False
def stamp(e, i, wait=False):
    if not STAMP: return
    e(f"s_memtime s[{68+4*i}:{69+4*i}]\ns_memrealtime s[{70+4*i}:{71+4*i}]")
    if wait: e("s_waitcnt lgkmcnt(0)")
def stamp_flush(e, kk, n):
    if not STAMP: return
    if OPT["dbg"] >= 0:
        e(f"""s_waitcnt lgkmcnt(0)
{"s_mov_b32 s38, s70" if kk == 0 else ""}
s_lshl_b32 s66, s2, 3
s_add_u32 s66, s66, s42
s_cmp_lg_u32 s66, {OPT["dbg"]*8}
s_cbranch_scc1 L_dbg{kk}
s_load_dwordx2 s[100:101], s[0:1], 64
v_mov_b32 v250, 0
s_mov_b64 exec, 1
s_waitcnt lgkmcnt(0)""")
        for i in range(n):
            e(f"s_sub_u32 s66, s{70+4*i}, s38\nv_mov_b32 v252, s66\nglobal_store_dword v250, v252, s[100:101] offset:{32*kk+4*i}\ns_nop 1")
        e(f"s_waitcnt vmcnt(0)\ns_mov_b64 exec, -1\nL_dbg{kk}:")
        return
    e(f"""s_waitcnt lgkmcnt(0)
s_lshl_b32 s66, s2, 3
s_add_u32 s66, s66, s42
s_lshl_b32 s66, s66, 6
s_add_u32 s66, s66, {(32<<20) + kk*256*8*64}
v_mov_b32 v250, 0
s_mov_b64 exec, 1""")
    for i in range(n):
        e(f"v_mov_b32 v252, s{68+4*i}\nv_mov_b32 v253, s{70+4*i}\nbuffer_store_dwordx2 v[252:253], v250, s[28:31], s66 offen offset:{8*i}\ns_nop 1")
        e.vmop("st")
    e("s_mov_b64 exec, -1")
def vr(a, n): return f"v[{a}:{a+n-1}]"
def srd(e, d, b, size):
    e(f"s_mov_b32 s{d}, s{b}\ns_mov_b32 s{d+1}, s{b+1}\ns_mov_b32 s{d+2}, {size}\ns_mov_b32 s{d+3}, 0x00020000")

LDS = 163840
XB = 57344
QX = 32768
def slot_base(i): return (4 - (7 - i) % 3) * 32768

def poll(e, label, vaddr, soff, nl):
    e(f"""s_mov_b32 s60, {SPIN}
s_mov_b64 exec, {hex((1 << nl) - 1)}
{label}:
buffer_load_dword v9, {vaddr}, s[28:31], {soff} offen sc1
s_sub_u32 s60, s60, 1
s_cbranch_scc1 {label}_x
s_waitcnt vmcnt(0)
v_cmp_ne_u32 vcc, s67, v9
s_cbranch_vccnz {label}
{label}_x:
s_mov_b64 exec, -1""")
    e.vm = []

def kernel(e, name):
    e(f".globl {name}\n.p2align 8\n.type {name},@function\n{name}:")
    e(f"s_cmp_ge_u32 s2, 256\ns_cbranch_scc1 L_end")
    stamp(e, 0)
    e("s_load_dwordx16 s[4:19], s[0:1], 0\ns_load_dwordx2 s[36:37], s[0:1], 72")
    e("""s_and_b32 s40, s2, 7
s_lshl_b32 s40, s40, 2
s_lshr_b32 s41, s2, 3
s_and_b32 s43, s41, 3
s_add_u32 s40, s40, s43             ; hh
s_lshr_b32 s41, s41, 2              ; b
v_lshrrev_b32 v1, 6, v0
v_and_b32 v0, 63, v0
v_readfirstlane_b32 s42, v1         ; wave""")
    e(f"""s_and_b32 s44, s40, 15            ; head
s_mul_i32 s45, s44, 56
v_lshrrev_b32 v2, 2, v0
v_mul_u32_u24 v2, 2688, v2
v_and_b32 v3, 3, v0
v_lshl_add_u32 v2, v3, 4, v2
v_add_u32 v2, s45, v2               ; v2 = W voffset
v_lshrrev_b32 v3, 3, v0
v_mul_u32_u24 v4, 896, v3
v_lshrrev_b32 v5, 4, v0
v_and_b32 v6, 7, v0
v_xor_b32 v7, v6, v5
v_lshl_add_u32 v3, v7, 4, v4
v_xor_b32 v7, 4, v7
v_lshl_add_u32 v4, v7, 4, v4
s_lshl_b32 s46, s41, 8
s_lshl_b32 s47, s42, 5
s_add_u32 s46, s46, s47
s_mul_i32 s47, s46, 896
s_lshl_b32 s48, s42, 12
s_add_u32 s48, s48, {XB}
s_and_b32 s49, s42, 3               ; e
s_mul_i32 s49, s49, {16*2688}
s_lshr_b32 s50, s42, 2              ; part (0=k,1=v)
s_mul_i32 s50, s50, 896
s_add_u32 s50, s50, s49
s_add_u32 s50, s50, 896
s_lshl_b32 s51, s42, 10             ; wave*1024""")
    if OPT["rot"]:
        e("""s_lshl_b32 s52, s43, 1
s_add_u32 s52, s52, s41
s_cmp_ge_u32 s52, 7
s_cselect_b32 s53, 7, 0
s_sub_u32 s52, s52, s53""")
    else:
        e("s_mov_b32 s52, 0")
    e("s_mov_b32 s39, s52                  ; c0")
    e("""s_waitcnt lgkmcnt(0)
s_cmp_ge_u32 s40, 16
s_cselect_b32 s6, s12, s6
s_cselect_b32 s7, s13, s7""")
    srd(e, 20, 4, S*D*2)
    srd(e, 24, 6, D*3*D*2)
    srd(e, 28, 36, WS_SIZE)
    srd(e, 32, 16, D*2)
    def load_step(i):
        e(f"""s_add_u32 m0, s51, {i*8192}
s_mul_i32 s53, s52, {64*2688}
s_add_u32 s53, s53, s50
buffer_load_dwordx4 v2, s[24:27], s53 offen lds
s_lshl_b32 s54, s52, 7
s_add_u32 s54, s54, s47""")
        e.vmop(("W", i))
        for u in range(4):
            e(f"""s_add_u32 m0, s48, {(i%3)*32768 + u*1024}
s_add_u32 s53, s54, {u*8*896}
buffer_load_dwordx4 v{3 + (u%2)}, s[20:23], s53 offen lds""")
            e.vmop(("X", i))
        e("""s_add_u32 s52, s52, 1
s_cmp_eq_u32 s52, 7
s_cselect_b32 s52, 0, s52""")
    def load_wq(t):
        e(f"""s_lshr_b32 s53, s42, 2
s_add_u32 s53, s53, s39
s_add_u32 s53, s53, {2*t}
s_cmp_ge_u32 s53, 7
s_cselect_b32 s54, 7, 0
s_sub_u32 s53, s53, s54
s_mul_i32 s53, s53, {64*2688}
s_add_u32 s53, s53, s49""")
        if t == 3: e(f"s_cmp_ge_u32 s42, 4\ns_cselect_b32 s53, {hex(OOB)}, s53")
        e(f"s_add_u32 m0, s51, {t*8192}\ns_nop 0\nbuffer_load_dwordx4 v2, s[24:27], s53 offen lds")
        e.vmop(("Wq", t))
    load_step(0); e("s_barrier"); load_step(1); e("s_barrier"); load_step(2)
    e(f"""v_mov_b32 v8, 0
s_mov_b32 s53, {WS_E}
buffer_load_dword v248, v8, s[28:31], s53 offen sc1
s_lshl_b32 s55, s41, 8
s_lshl_b32 s56, s40, 3
s_add_u32 s55, s55, s56
s_add_u32 s55, s55, s42
s_mul_i32 s56, s55, 896
v_lshlrev_b32 v8, 4, v0
v_mov_b32 v9, {hex(OOB)}
v_cmp_gt_u32 vcc, 56, v0
s_nop 1
v_cndmask_b32 v9, v9, v8, vcc
buffer_load_dwordx4 v[240:243], v9, s[20:23], s56 offen
buffer_load_dwordx4 v[244:247], v9, s[32:35], 0 offen""")
    e.vmop("g", 3)
    if OPT["touch"]:
        srd(e, 60, 18, S*D*2)
        e(f"""v_mov_b32 v8, 0
s_lshl_b32 s53, s40, 18
buffer_load_dword v249, v8, s[28:31], s53 offen sc1
s_lshl_b32 s53, s41, 19
s_add_u32 s53, s53, {WS_O}
buffer_load_dword v249, v8, s[28:31], s53 offen sc1
s_and_b32 s54, s2, 7
s_lshl_b32 s53, s54, 19
s_add_u32 s53, s53, {WS_O}
buffer_load_dword v249, v8, s[28:31], s53 offen sc1
s_mul_i32 s53, s54, {256*896}
buffer_load_dword v249, v8, s[60:63], s53 offen sc1
s_add_u32 s53, s53, {256*896-4}
buffer_load_dword v249, v8, s[60:63], s53 offen sc1""")
        e.vmop("g", 5)
    e(f"""v_and_b32 v8, 31, v0               ; row
v_lshrrev_b32 v9, 5, v0             ; h
v_lshrrev_b32 v10, 1, v8
v_and_b32 v10, 7, v10               ; key
v_lshlrev_b32 v11, 7, v8
v_add_u32 v11, s48, v11""")
    for ee in range(4):
        e(f"""v_add_u32 v16, {2*ee}, v9
v_xor_b32 v16, v16, v10
v_lshl_add_u32 v{12+ee}, v16, 4, v11
v_add_u32 v{24+ee}, 65536, v{12+ee}""")
    e(f"""v_lshrrev_b32 v16, 2, v0
v_and_b32 v16, 3, v16               ; r
v_lshl_add_u32 v16, v9, 3, v16      ; 8h + r
v_lshlrev_b32 v16, 6, v16
v_lshrrev_b32 v17, 4, v0
v_and_b32 v17, 1, v17
v_lshl_add_u32 v16, v17, 5, v16
v_and_b32 v17, 3, v0
v_lshl_add_u32 v16, v17, 3, v16""")
    AQ, AK, AV, WF, XF = 32, 48, 64, 80, 128
    def wread(ks):
        b = WF + (ks % 2) * 8
        for p in range(2):
            off = (ks // 4) * 8192 + p * 4096 + (ks % 4) * 1024
            e(f"ds_read_b64_tr_b16 {vr(b+4*p, 2)}, v16 offset:{off}\nds_read_b64_tr_b16 {vr(b+4*p+2, 2)}, v16 offset:{off+256}")
    for i in range(7):
        e.vmwait(("X", i), ("W", i))
        e("s_barrier")
        if i in (0, 3): stamp(e, 1 + i//3, True)
        xb = XF + i * 16
        for ee in range(4):
            e(f"ds_read_b128 {vr(xb+4*ee, 4)}, v{(24 if i % 3 == 2 else 12)+ee} offset:{(i%3%2)*32768}")
        wread(4*i)
        for ee in range(4):
            ks = 4*i + ee
            if ee < 3:
                wread(ks+1); e("s_waitcnt lgkmcnt(4)")
            else:
                e("s_waitcnt lgkmcnt(0)")
            if ee == 0:
                if i + 3 < 7: load_step(i+3)
                if i == 4:
                    load_wq(0); load_wq(1)
                    if OPT["wqe"]: load_wq(2); load_wq(3)
            b = WF + (ks % 2) * 8
            x = vr(xb+4*ee, 4)
            z = ks == 0
            e(f"v_mfma_f32_32x32x16_bf16 {vr(AK,16)}, {vr(b,4)}, {x}, {'0' if z else vr(AK,16)}")
            e(f"v_mfma_f32_32x32x16_bf16 {vr(AV,16)}, {x}, {vr(b+4,4)}, {'0' if z else vr(AV,16)}")
    stamp(e, 3)
    e("v_mov_b32 v20, 0")
    for i in range(4):
        e(f"""v_lshlrev_b32 v18, 16, v{240+i}
v_lshlrev_b32 v19, 16, v{244+i}
v_fmac_f32 v20, v18, v19
v_and_b32 v18, 0xffff0000, v{240+i}
v_and_b32 v19, 0xffff0000, v{244+i}
v_fmac_f32 v20, v18, v19""")
    e("s_mov_b32 exec_lo, 0\ns_nop 0")
    for r in range(12, 16): e(f"v_mov_b32 v{AK+r}, 0")
    e("s_mov_b64 exec, -1\ns_nop 0")
    for r in range(8):
        e(f"v_cvt_pk_bf16_f32 v{96+r}, v{AK+2*r}, v{AK+2*r+1}")
    for r in range(8):
        e(f"v_cvt_pk_bf16_f32 v{104+r}, v{AV+2*r}, v{AV+2*r+1}")
    e("s_mov_b32 exec_lo, 0xf0000000\ns_mov_b32 exec_hi, 0xf0000000\nv_mov_b32 v18, 0x3f803f80")
    e("s_mov_b32 exec_lo, 0xe0000000\ns_mov_b32 exec_hi, 0xe0000000\nv_mov_b32 v18, 0")
    e("s_mov_b32 exec_lo, 0xf0000000\ns_mov_b32 exec_hi, 0xf0000000")
    for r in range(8): e(f"v_mov_b32 v{104+r}, v18")
    e(f"""s_mov_b64 exec, -1
v_lshlrev_b32 v5, 4, v0             ; v5 = lane*16
v_and_b32 v21, 0x33, v0
v_and_b32 v22, 4, v0
v_lshl_or_b32 v21, v22, 1, v21
v_and_b32 v22, 8, v0
v_lshrrev_b32 v22, 1, v22
v_or_b32 v21, v21, v22
v_lshlrev_b32 v21, 4, v21           ; swap23(lane)*16
s_lshr_b32 s58, s46, 5              ; tile
s_lshl_b32 s59, s40, 6
s_add_u32 s58, s58, s59
s_lshl_b32 s59, s58, 12
buffer_store_dwordx4 v[96:99], v21, s[28:31], s59 offen sc1
buffer_store_dwordx4 v[100:103], v21, s[28:31], s59 offen offset:1024 sc1
buffer_store_dwordx4 v[104:107], v5, s[28:31], s59 offen offset:2048 sc1
buffer_store_dwordx4 v[108:111], v5, s[28:31], s59 offen offset:3072 sc1
s_lshl_b32 s58, s42, 12
s_add_u32 s58, s58, {slot_base(0)}
v_add_u32 v21, s58, v21
v_add_u32 v22, s58, v5
ds_write_b128 v21, v[96:99]
ds_write_b128 v21, v[100:103] offset:1024
ds_write_b128 v22, v[104:107] offset:2048
ds_write_b128 v22, v[108:111] offset:3072""")
    e.vmop("kv", 4)
    for m in ("row_shr:1", "row_shr:2", "row_shr:4", "row_shr:8"):
        e(f"s_nop 1\nv_add_f32_dpp v20, v20, v20 {m} row_mask:0xf bank_mask:0xf bound_ctrl:0")
    e(f"""s_nop 1
v_readlane_b32 s60, v20, 15
v_readlane_b32 s61, v20, 31
v_readlane_b32 s62, v20, 47
v_readlane_b32 s63, v20, 63
v_readfirstlane_b32 s67, v248
s_nop 1
v_mov_b32 v20, s60
v_add_f32 v20, s61, v20
v_add_f32 v20, s62, v20
v_add_f32 v20, s63, v20
v_mul_f32 v20, {hex(f2u(-math.log2(math.e)))}, v20
v_exp_f32 v20, v20
s_mul_i32 s67, s67, 0x41c64e6d
v_add_f32 v20, 1.0, v20
v_rcp_f32 v20, v20
s_add_u32 s67, s67, 0x3039
s_lshl_b32 s55, s55, 2
s_add_u32 s55, s55, {WS_G}
v_mov_b32 v21, 0
s_mov_b64 exec, 1
buffer_store_dword v20, v21, s[28:31], s55 offen sc1
s_mov_b64 exec, -1""")
    e.vmop("kv", 1)
    if not OPT["wqe"]: load_wq(2); load_wq(3)
    def qread(ks):
        b = WF + (ks % 4) * 4
        e(f"ds_read_b64_tr_b16 {vr(b, 2)}, v16 offset:{ks*1024}\nds_read_b64_tr_b16 {vr(b+2, 2)}, v16 offset:{ks*1024+256}")
    def publish():
        e(f"""s_cmp_lg_u32 s42, 0
s_cbranch_scc1 L_nopub
s_lshl_b32 s53, s40, 3
s_add_u32 s53, s53, s41
s_lshl_b32 s53, s53, 7
s_add_u32 s53, s53, {WS_F1}
v_mov_b32 v20, s67
s_mov_b64 exec, 1
buffer_store_dword v20, v21, s[28:31], s53 offen sc1
s_mov_b64 exec, -1
L_nopub:""")
    for t in range(4):
        if t == OPT["pubt"]: e.vmwait(("Wq", t), "kv")
        else: e.vmwait(("Wq", t))
        e("s_barrier")
        if t == OPT["pubt"]:
            publish()
        kss = list(range(8*t, min(8*t+8, 28)))
        qread(kss[0]); qread(kss[1])
        for j, ks in enumerate(kss):
            if j + 2 < len(kss):
                qread(ks+2); e("s_waitcnt lgkmcnt(4)")
            else:
                e(f"s_waitcnt lgkmcnt({2*(len(kss)-1-j)})")
            e(f"v_mfma_f32_32x32x16_bf16 {vr(AQ,16)}, {vr(WF+(ks%4)*4,4)}, {vr(XF+4*ks,4)}, {'0' if ks == 0 else vr(AQ,16)}")
        if t == OPT["pubt"]: e.vm = [x for x in e.vm if x == ("Wq", 3)]
    stamp(e, 4)
    X = [32, 48, 64, 80]; O = [96, 112]; Q = [128, 136]; KF = [144, 152]; VF = [160, 168]; IDX = 176
    e(f"""s_and_b32 s44, s42, 3              ; qp
s_lshr_b32 s45, s42, 2              ; kh
s_lshl_b32 s46, s40, 18
s_lshl_b32 s47, s45, 14
s_lshl_b32 s48, s44, 10
s_add_u32 s47, s47, s48
s_add_u32 s49, s46, s47
s_lshl_b32 s50, s45, 14
s_add_u32 s50, s50, 65536
v_add_u32 v3, s50, v5
v_add_u32 v4, 65536, v3             ; slot U4
s_lshl_b32 s53, s42, 11
s_add_u32 s53, s53, {QX}
v_add_u32 v6, s53, v5
s_lshl_b32 s53, s44, 12
s_add_u32 s53, s53, {QX}
v_add_u32 v7, s53, v5
v_lshlrev_b32 v8, 7, v0
s_mov_b32 s57, {hex(f2u(CSCALE))}""")
    e(f"""s_lshr_b32 s62, s2, 3
s_mul_i32 s61, s62, 0x2493
s_lshr_b32 s61, s61, 16
s_mul_i32 s63, s61, 7
s_sub_u32 s62, s62, s63
s_cmp_lt_u32 s2, 224
s_cselect_b32 s63, {D*D*2}, 0""")
    srd(e, 20, 8, "s63"); srd(e, 24, 14, "s63")
    e(f"""v_lshrrev_b32 v10, 3, v0
v_mul_u32_u24 v11, 896, v10
v_and_b32 v12, 7, v0
v_and_b32 v10, 2, v10
v_lshlrev_b32 v10, 1, v10
v_xor_b32 v12, v12, v10
v_lshl_add_u32 v2, v12, 4, v11
s_mul_i32 s63, s42, {8*896}
s_lshl_b32 s64, s62, 7
s_add_u32 s63, s63, s64""")
    for r in range(16): e(f"v_mul_f32 v{AQ+r}, s57, v{AQ+r}")
    for r in range(8): e(f"v_cvt_pk_bf16_f32 v{80+r}, v{AQ+2*r}, v{AQ+2*r+1}")
    e("s_mov_b32 exec_lo, 0\nv_mov_b32 v86, 0\nv_mov_b32 v87, 0\ns_mov_b64 exec, -1")
    e(f"ds_write_b128 v6, v[80:83]\nds_write_b128 v6, v[84:87] offset:1024\nv_mov_b32 v{IDX}, 0xdddddddd")
    for r in range(32): e(f"v_mov_b32 v{O[0]+r}, 0")
    if OPT["pubt"] == 4: e("s_waitcnt vmcnt(0)")
    e("s_waitcnt lgkmcnt(0)\ns_barrier")
    for i in range(4): e(f"ds_read_b128 {vr(Q[0]+4*i,4)}, v7 offset:{1024*i}")
    if OPT["pubt"] == 4: publish()
    def dma(c):
        e(f"s_add_u32 s54, s41, {c}\ns_and_b32 s54, s54, 7\ns_lshl_b32 s54, s54, 15\ns_add_u32 s54, s54, s49")
        for u in range(4):
            e(f"""s_add_u32 m0, s47, {slot_base(c) + u*4096}
s_add_u32 s53, s54, {u*4096}
buffer_load_dwordx4 v5, s[28:31], s53 offen {"sc1 " if OPT["kvsc"] else ""}lds""")
            e.vmop(("KV", c))
    def wo(t, touch=None):
        r = "s[20:23]" if t < 7 else "s[24:27]"
        if touch is None:
            e(f"s_add_u32 m0, s51, {t*8192}\ns_add_u32 s53, s63, {(t%7)*64*896}\nbuffer_load_dwordx4 v2, {r}, s53 offen lds")
        else:
            e(f"s_add_u32 s53, s63, {(t%7)*64*896}\nbuffer_load_dwordx4 {vr(touch,4)}, v2, {r}, s53 offen")
        e.vmop("wo")
    def lds(t):
        c, u = t // 4, t % 4
        sb = slot_base(c)
        return ("v4", u*4096) if sb == 131072 else ("v3", sb - 65536 + u * 4096)
    def rdK(t):
        a, o = lds(t)
        e(f"ds_read_b128 {vr(KF[t%2],4)}, {a} offset:{o}\nds_read_b128 {vr(KF[t%2]+4,4)}, {a} offset:{o+1024}")
    def rdV(t):
        a, o = lds(t)
        e(f"ds_read_b128 {vr(VF[t%2],4)}, {a} offset:{o+2048}\nds_read_b128 {vr(VF[t%2]+4,4)}, {a} offset:{o+3072}")
    def Smm(n, i):
        t, a = n // 2, n % 2
        d = vr(X[n%4], 16)
        e(f"v_mfma_f32_32x32x16_bf16 {d}, {vr(KF[t%2]+4*i,4)}, {vr(Q[a]+4*i,4)}, {'0' if i == 0 else d}")
    def PV(n, i):
        t, a = n // 2, n % 2
        e(f"v_smfmac_f32_32x32x32_bf16 {vr(O[a],16)}, {vr(VF[t%2]+4*i,4)}, {vr(X[n%4]+8*i,8)}, v{IDX}")
    def ex(n, r0):
        for r in range(r0, r0+4): e(f"v_exp_f32 v{X[n%4]+r}, v{X[n%4]+r}")
    rdK(0)
    e("s_waitcnt lgkmcnt(0)")
    Smm(0, 0); Smm(0, 1)
    e("s_nop 15")
    NT = 32
    for n in range(2*NT):
        t, a = n // 2, n % 2
        if a == 0:
            if t == OPT["pollt"]:
                e(f"s_lshl_b32 s53, s40, 10\ns_add_u32 s53, s53, {WS_F1}")
                poll(e, "L_poll1", "v8", "s53", 8)
                stamp(e, 5)
                dma(1); dma(2)
            if t % 4 == 3 and t + 1 < NT:
                c1 = (t + 1) // 4
                e.vmwait(("KV", c1))
                e("s_barrier")
                if c1 == 1: stamp(e, 6)
                if 2 <= c1 < 7: dma(c1 + 1)
                if c1 <= 4: wo(2*c1 - 2); wo(2*c1 - 1)
                if c1 in (5, 6):
                    for k in range(3): wo(8 + 3*(c1-5) + k, 180 + 4*k)
                if c1 == 7:
                    for k in range(8, 12): wo(k)
            if t + 1 < NT: rdK(t+1)
            rdV(t)
        else:
            e("s_waitcnt lgkmcnt(0)")
        if n + 1 < 2*NT: Smm(n+1, 0)
        ex(n, 0)
        if n + 1 < 2*NT: Smm(n+1, 1)
        ex(n, 4)
        if n > 0: PV(n-1, 0)
        ex(n, 8)
        if n > 0: PV(n-1, 1)
        ex(n, 12)
    e("s_nop 1")
    PV(2*NT-1, 0); PV(2*NT-1, 1)
    stamp(e, 7); stamp_flush(e, 0, 8); stamp(e, 0)
    e(f"""s_barrier
s_lshl_b32 s54, s42, 12
s_add_u32 s54, s54, 131072
v_add_u32 v6, s54, v5
s_xor_b32 s54, s54, 16384
v_add_u32 v7, s54, v5
s_nop 7
s_cmp_eq_u32 s45, 0
s_cbranch_scc1 L_k0""")
    for i in range(4): e(f"ds_write_b128 v6, {vr(O[0]+4*i,4)} offset:{1024*i}")
    for r in range(16): e(f"v_mov_b32 v{X[0]+r}, v{O[1]+r}")
    for r in range(8): e(f"v_mov_b32 v{Q[0]+r}, v{Q[1]+r}")
    e(f"s_branch L_k1\nL_k0:")
    for i in range(4): e(f"ds_write_b128 v6, {vr(O[1]+4*i,4)} offset:{1024*i}")
    for r in range(16): e(f"v_mov_b32 v{X[0]+r}, v{O[0]+r}")
    e(f"L_k1:\ns_waitcnt lgkmcnt(0)\ns_barrier")
    for i in range(4): e(f"ds_read_b128 {vr(X[1]+4*i,4)}, v7 offset:{1024*i}")
    e("s_waitcnt lgkmcnt(0)")
    A = X[0]
    for r in range(16): e(f"v_add_f32 v{A+r}, v{A+r}, v{X[1]+r}")
    e(f"""v_mov_b32 v10, v{A+12}
v_mov_b32 v9, v{A+12}
v_add_f32 v11, abs(v{A}), abs(v{A+1})
v_add_f32 v11, abs(v{A+2}), v11
v_permlane32_swap_b32 v10, v9""")
    for r in range(3, 16): e(f"v_add_f32 v11, abs(v{A+r}), v11")
    e(f"""s_mov_b32 s56, {hex(f2u(2.0**-16))}
s_mov_b32 s57, {hex(f2u(2.0**64))}
s_mov_b32 s58, {hex(f2u(2.0**126))}
v_cmp_le_f32 s[64:65], s56, v9
v_cmp_ge_f32 vcc, s57, v9
s_and_b64 s[64:65], s[64:65], vcc
v_cmp_ge_f32 vcc, s58, v11
s_and_b64 s[64:65], s[64:65], vcc
s_cmp_eq_u64 s[64:65], exec
s_cbranch_scc0 L_fallback
L_fin:
v_rcp_f32 v9, v9
s_nop 0""")
    for r in range(16): e(f"v_mul_f32 v{A+r}, v9, v{A+r}")
    for r in range(8): e(f"v_cvt_pk_bf16_f32 v{X[1]+r}, v{A+2*r}, v{A+2*r+1}")
    e(f"s_mov_b32 exec_lo, 0\nv_mov_b32 v{X[1]+6}, 0\nv_mov_b32 v{X[1]+7}, 0\ns_mov_b64 exec, -1")
    e(f"""s_lshl_b32 s52, s41, 3
s_lshl_b32 s53, s44, 1
s_add_u32 s52, s52, s53
s_add_u32 s52, s52, s45
s_lshl_b32 s52, s52, 5
s_add_u32 s52, s52, s40
s_lshl_b32 s53, s52, 11
s_add_u32 s53, s53, {WS_O}
buffer_store_dwordx4 {vr(X[1],4)}, v5, s[28:31], s53 offen sc1
buffer_store_dwordx4 {vr(X[1]+4,4)}, v5, s[28:31], s53 offen offset:1024 sc1""")
    e.vmop("o", 2)
    wo(12); wo(13)
    stamp(e, 1)
    e(f"""s_lshl_b32 s52, s52, 7
s_add_u32 s52, s52, {WS_F2}
v_mov_b32 v20, s67
v_mov_b32 v21, 0""")
    e.vmwait("o")
    e(f"""s_mov_b64 exec, 1
buffer_store_dword v20, v21, s[28:31], s52 offen sc1
s_mov_b64 exec, -1
s_cmp_ge_u32 s2, 224
s_cbranch_scc1 L_end""")
    stamp(e, 2)
    OF = 64
    srd(e, 32, 18, S*D*2)
    e(f"""s_and_b32 s44, s42, 1               ; ri
s_lshr_b32 s45, s42, 1              ; kq
s_and_b32 s46, s2, 7
s_lshl_b32 s46, s46, 3
s_lshl_b32 s47, s61, 1
s_add_u32 s46, s46, s47
s_add_u32 s46, s46, s44
s_lshl_b32 s47, s46, 2
s_add_u32 s47, s47, s45
s_lshl_b32 s48, s47, 10
s_add_u32 s48, s48, {WS_F2}
s_lshl_b32 s47, s47, 14
s_add_u32 s47, s47, {WS_O}
v_and_b32 v6, 31, v0
v_lshlrev_b32 v7, 2, v6
v_lshrrev_b32 v18, 5, v0            ; h
v_lshrrev_b32 v9, 2, v0
v_and_b32 v9, 3, v9                 ; r
v_lshlrev_b32 v12, 7, v9
v_lshrrev_b32 v9, 1, v9
v_lshl_add_u32 v12, v9, 6, v12
v_lshrrev_b32 v9, 4, v0
v_and_b32 v9, 1, v9
v_lshl_add_u32 v12, v9, 5, v12
v_and_b32 v9, 3, v0
v_lshl_add_u32 v12, v9, 3, v12
s_mul_i32 s54, s45, 28672
v_add_u32 v12, s54, v12
v_xor_b32 v13, 64, v12
v_lshl_add_u32 v10, v18, 9, v12
v_xor_b32 v11, 64, v10""")
    poll(e, "L_poll2", "v8", "s48", 8)
    stamp(e, 3)
    for u in range(16):
        if u % 4 == 0: e(f"s_add_u32 s53, s47, {(u//4)*4096}")
        e(f"buffer_load_dwordx4 {vr(OF+4*u,4)}, v5, s[28:31], s53 offen offset:{(u%4)*1024} sc1")
        e.vmop(("of", u))
    e("s_barrier")
    e(f"""s_lshl_b32 s53, s46, 7
s_add_u32 s53, s53, {WS_G}
buffer_load_dword v19, v7, s[28:31], s53 offen sc1""")
    e.vmop("g")
    AC = [32, 48]; WF = 128
    def wread3(f):
        b = WF + (f % 2) * 8
        k0 = 28 * (f // 2) + 16 * (f % 2)
        for ci in range(2):
            e(f"ds_read_b64_tr_b16 {vr(b+4*ci,2)}, v{10+ci} offset:{k0*128}\nds_read_b64_tr_b16 {vr(b+4*ci+2,2)}, v{(12 if f % 2 else 10)+ci} offset:{(k0+8)*128}")
    wread3(0)
    for f in range(16):
        if f < 15:
            wread3(f+1); e("s_waitcnt lgkmcnt(4)")
        else: e("s_waitcnt lgkmcnt(0)")
        e.vmwait(("of", f))
        b = WF + (f % 2) * 8
        for ci in range(2):
            e(f"v_mfma_f32_32x32x16_bf16 {vr(AC[ci],16)}, {vr(b+4*ci,4)}, {vr(OF+4*f,4)}, {'0' if f == 0 else vr(AC[ci],16)}")
    stamp(e, 4)
    e(f"""s_waitcnt vmcnt(0)
v_sub_f32 v13, 1.0, v19
s_cmp_ge_u32 s42, 4
s_cselect_b64 vcc, -1, 0
s_barrier
v_cndmask_b32 v12, v19, v13, vcc
s_lshl_b32 s54, s42, 13
v_add_u32 v14, s54, v5
s_nop 7""")
    for r in range(32): e(f"v_mul_f32 v{32+r}, v12, v{32+r}")
    for pi in range(4):
        e(f"ds_write_b128 v14, {vr(32+8*pi,4)} offset:{pi*2048}\nds_write_b128 v14, {vr(36+8*pi,4)} offset:{pi*2048+1024}")
    e(f"""s_lshl_b32 s54, s44, 13
s_lshl_b32 s55, s45, 11
s_add_u32 s54, s54, s55
v_add_u32 v14, s54, v5
s_waitcnt lgkmcnt(0)
s_barrier""")
    for q in range(4):
        e(f"ds_read_b128 {vr(64+8*q,4)}, v14 offset:{q*16384}\nds_read_b128 {vr(68+8*q,4)}, v14 offset:{q*16384+1024}")
    e(f"""v_mul_u32_u24 v15, 896, v6
v_lshl_add_u32 v15, v18, 4, v15
s_mul_i32 s54, s46, {32*896}
s_lshl_b32 s55, s62, 7
s_add_u32 s54, s54, s55
s_lshl_b32 s55, s45, 5
s_add_u32 s54, s54, s55
s_waitcnt lgkmcnt(0)""")
    for r in range(8):
        e(f"v_add_f32 v{64+r}, v{64+r}, v{72+r}\nv_add_f32 v{80+r}, v{80+r}, v{88+r}")
    for r in range(8): e(f"v_add_f32 v{64+r}, v{64+r}, v{80+r}")
    for r in range(4): e(f"v_cvt_pk_bf16_f32 v{96+r}, v{64+2*r}, v{64+2*r+1}")
    e(f"""s_nop 1
v_permlane32_swap_b32 v96, v98
v_permlane32_swap_b32 v97, v99
buffer_store_dwordx4 v[96:99], v15, s[32:35], s54 offen""")
    stamp(e, 5)
    if STAMP: e("s_waitcnt vmcnt(0)")
    stamp(e, 6); stamp_flush(e, 1, 7)
    e(f"""s_or_b32 s53, s2, s42
s_cmp_lg_u32 s53, 0
s_cbranch_scc1 L_end
s_mov_b32 s53, {WS_E}
s_mov_b64 exec, 1
buffer_store_dword v20, v21, s[28:31], s53 offen sc1
L_end:
s_endpgm""")
    Sx, M = X[1], X[2]
    e(f"""L_fallback:
v_mov_b32 v10, 0xff800000
s_mov_b32 s56, s46
s_add_u32 s57, s46, 262144
L_fb1:
buffer_load_dwordx4 {vr(KF[0],4)}, v5, s[28:31], s56 offen sc1
buffer_load_dwordx4 {vr(KF[0]+4,4)}, v5, s[28:31], s56 offen offset:1024 sc1
s_waitcnt vmcnt(0)
v_mfma_f32_32x32x16_bf16 {vr(Sx,16)}, {vr(KF[0],4)}, {vr(Q[0],4)}, 0
v_mfma_f32_32x32x16_bf16 {vr(Sx,16)}, {vr(KF[0]+4,4)}, {vr(Q[0]+4,4)}, {vr(Sx,16)}
s_nop 15""")
    for r in range(0, 16, 2): e(f"v_max3_f32 v10, v{Sx+r}, v{Sx+r+1}, v10")
    e(f"""s_add_u32 s56, s56, 4096
s_cmp_lt_u32 s56, s57
s_cbranch_scc1 L_fb1
v_mov_b32 v11, v10
s_nop 1
v_permlane32_swap_b32 v10, v11
s_nop 1
v_max_f32 v10, v10, v11""")
    for r in range(16): e(f"v_sub_f32 v{M+r}, 0, v10\nv_mov_b32 v{A+r}, 0")
    e(f"""s_mov_b32 s56, s46
L_fb2:
buffer_load_dwordx4 {vr(KF[0],4)}, v5, s[28:31], s56 offen sc1
buffer_load_dwordx4 {vr(KF[0]+4,4)}, v5, s[28:31], s56 offen offset:1024 sc1
buffer_load_dwordx4 {vr(VF[0],4)}, v5, s[28:31], s56 offen offset:2048 sc1
buffer_load_dwordx4 {vr(VF[0]+4,4)}, v5, s[28:31], s56 offen offset:3072 sc1
s_waitcnt vmcnt(0)
v_mfma_f32_32x32x16_bf16 {vr(Sx,16)}, {vr(KF[0],4)}, {vr(Q[0],4)}, {vr(M,16)}
v_mfma_f32_32x32x16_bf16 {vr(Sx,16)}, {vr(KF[0]+4,4)}, {vr(Q[0]+4,4)}, {vr(Sx,16)}
s_nop 15""")
    for r in range(16): e(f"v_exp_f32 v{Sx+r}, v{Sx+r}")
    e(f"""s_nop 1
v_smfmac_f32_32x32x32_bf16 {vr(A,16)}, {vr(VF[0],4)}, {vr(Sx,8)}, v{IDX}
v_smfmac_f32_32x32x32_bf16 {vr(A,16)}, {vr(VF[0]+4,4)}, {vr(Sx+8,8)}, v{IDX}
s_add_u32 s56, s56, 4096
s_cmp_lt_u32 s56, s57
s_cbranch_scc1 L_fb2
s_nop 15
v_mov_b32 v10, v{A+12}
v_mov_b32 v9, v{A+12}
s_nop 1
v_permlane32_swap_b32 v10, v9
s_nop 1
s_branch L_fin""")

def main(out):
    e = E()
    hdr = open("cdna_kernels/" + NAME + ".s.ref").read().split("; Override launch")[0]
    e.L.append(hdr.rstrip("\n"))
    e.L.append(f"; @launch grid=(256,1,1) block=(512,1,1) lds={LDS}")
    e('.amdgcn_target "amdgcn-amd-amdhsa--gfx950"\n.text')
    kn = NAME + "_kernel"
    kernel(e, kn)
    t = e.text() + f""".section .rodata,"a"
.p2align 6
.amdhsa_kernel {kn}
  .amdhsa_next_free_vgpr 256
  .amdhsa_next_free_sgpr 102
  .amdhsa_accum_offset 256
  .amdhsa_group_segment_fixed_size 0
  .amdhsa_kernarg_size 80
  .amdhsa_user_sgpr_count 2
  .amdhsa_user_sgpr_kernarg_segment_ptr 1
  .amdhsa_system_sgpr_workgroup_id_x 1
  .amdhsa_float_denorm_mode_32 3
.end_amdhsa_kernel
"""
    open(out, "w").write(t)
if __name__ == "__main__":
    args = sys.argv[1:]
    if "--stamp" in args: STAMP = True; args.remove("--stamp")
    for a in list(args):
        if "=" in a:
            k, v = a.split("="); OPT[k] = int(v); args.remove(a)
    main(args[0] if args else "cdna_kernels/" + NAME + ".s")
```

```python
import sys, math, struct
NAME = "gated_mix__mha_block__mha_block__prompt"
S, D, H, DH = 2048, 448, 16, 28
WS_KV, WS_O, WS_G, WS_F1, WS_F2, WS_E = 0, 8 << 20, (12 << 20) + (320 << 10), (12 << 20) + (256 << 10), 12 << 20, (12 << 20) + (384 << 10)
WS_SIZE = 268435456
CSCALE = math.log2(math.e) / math.sqrt(DH)
OOB = 0x7ff00000
SPIN = 1 << 17
OPT = dict(rot=1, pollt=1, wqe=1, pubt=3, kvsc=1, touch=0, padp=-1, padt=0, dbg=-1)
def f2u(x): return struct.unpack("<I", struct.pack("<f", x))[0]

class E:
    def __init__(s): s.L = []; s.vm = []
    def __call__(s, t):
        for l in t.strip("\n").split("\n"):
            if not l.strip(): continue
            s.L.append(l if l.rstrip().endswith(":") or l.startswith(".") else "    " + l.strip())
    def vmop(s, tag, n=1): s.vm += [tag] * n
    def vmwait(s, *tags):
        need = max(i for i, o in enumerate(s.vm) if o in tags)
        n = len(s.vm) - 1 - need
        assert n < 64
        s(f"s_waitcnt vmcnt({n})")
    def text(s): return "\n".join(s.L) + "\n"

STAMP = False
NST = [0]
def stamp(e, i, wait=False):
    k = NST[0]; NST[0] += 1
    if OPT["padp"] >= 0:
        if k == 0: e("s_memrealtime s[68:69]")
        if k == OPT["padp"]:
            e(f"""L_pad:
s_memrealtime s[70:71]
s_waitcnt lgkmcnt(0)
s_sub_u32 s70, s70, s68
s_cmp_lt_u32 s70, {OPT["padt"]}
s_cbranch_scc1 L_pad""")
    if not STAMP: return
    e(f"s_memtime s[{68+4*i}:{69+4*i}]\ns_memrealtime s[{70+4*i}:{71+4*i}]")
    if wait: e("s_waitcnt lgkmcnt(0)")
def stamp_flush(e, kk, n):
    if not STAMP: return
    if OPT["dbg"] >= 0:
        e(f"""s_waitcnt lgkmcnt(0)
{"s_mov_b32 s38, s70" if kk == 0 else ""}
s_lshl_b32 s66, s2, 3
s_add_u32 s66, s66, s42
s_cmp_lg_u32 s66, {OPT["dbg"]*8}
s_cbranch_scc1 L_dbg{kk}
s_load_dwordx2 s[100:101], s[0:1], 64
v_mov_b32 v250, 0
s_mov_b64 exec, 1
s_waitcnt lgkmcnt(0)""")
        for i in range(n):
            e(f"s_sub_u32 s66, s{70+4*i}, s38\nv_mov_b32 v252, s66\nglobal_store_dword v250, v252, s[100:101] offset:{32*kk+4*i}\ns_nop 1")
        e(f"s_waitcnt vmcnt(0)\ns_mov_b64 exec, -1\nL_dbg{kk}:")
        return
    e(f"""s_waitcnt lgkmcnt(0)
s_lshl_b32 s66, s2, 3
s_add_u32 s66, s66, s42
s_lshl_b32 s66, s66, 6
s_add_u32 s66, s66, {(32<<20) + kk*256*8*64}
v_mov_b32 v250, 0
s_mov_b64 exec, 1""")
    for i in range(n):
        e(f"v_mov_b32 v252, s{68+4*i}\nv_mov_b32 v253, s{70+4*i}\nbuffer_store_dwordx2 v[252:253], v250, s[28:31], s66 offen offset:{8*i}\ns_nop 1")
        e.vmop("st")
    e("s_mov_b64 exec, -1")
def vr(a, n): return f"v[{a}:{a+n-1}]"
def srd(e, d, b, size):
    e(f"s_mov_b32 s{d}, s{b}\ns_mov_b32 s{d+1}, s{b+1}\ns_mov_b32 s{d+2}, {size}\ns_mov_b32 s{d+3}, 0x00020000")

LDS = 163840
XB = 57344
QX = 32768
def slot_base(i): return (4 - (7 - i) % 3) * 32768

def poll(e, label, vaddr, soff, nl):
    e(f"""s_mov_b32 s60, {SPIN}
s_mov_b64 exec, {hex((1 << nl) - 1)}
{label}:
buffer_load_dword v9, {vaddr}, s[28:31], {soff} offen sc1
s_sub_u32 s60, s60, 1
s_cbranch_scc1 {label}_x
s_waitcnt vmcnt(0)
v_cmp_ne_u32 vcc, s67, v9
s_cbranch_vccnz {label}
{label}_x:
s_mov_b64 exec, -1""")
    e.vm = []

def kernel(e, name):
    e(f".globl {name}\n.p2align 8\n.type {name},@function\n{name}:")
    e(f"s_cmp_ge_u32 s2, 256\ns_cbranch_scc1 L_end")
    stamp(e, 0)
    e("s_load_dwordx16 s[4:19], s[0:1], 0\ns_load_dwordx2 s[36:37], s[0:1], 72")
    e("""s_and_b32 s40, s2, 7
s_lshl_b32 s40, s40, 2
s_lshr_b32 s41, s2, 3
s_and_b32 s43, s41, 3
s_add_u32 s40, s40, s43             ; hh
s_lshr_b32 s41, s41, 2              ; b
v_lshrrev_b32 v1, 6, v0
v_and_b32 v0, 63, v0
v_readfirstlane_b32 s42, v1         ; wave""")
    e(f"""s_and_b32 s44, s40, 15            ; head
s_mul_i32 s45, s44, 56
v_lshrrev_b32 v2, 2, v0
v_mul_u32_u24 v2, 2688, v2
v_and_b32 v3, 3, v0
v_lshl_add_u32 v2, v3, 4, v2
v_add_u32 v2, s45, v2               ; v2 = W voffset
v_lshrrev_b32 v3, 3, v0
v_mul_u32_u24 v4, 896, v3
v_lshrrev_b32 v5, 4, v0
v_and_b32 v6, 7, v0
v_xor_b32 v7, v6, v5
v_lshl_add_u32 v3, v7, 4, v4
v_xor_b32 v7, 4, v7
v_lshl_add_u32 v4, v7, 4, v4
s_lshl_b32 s46, s41, 8
s_lshl_b32 s47, s42, 5
s_add_u32 s46, s46, s47
s_mul_i32 s47, s46, 896
s_lshl_b32 s48, s42, 12
s_add_u32 s48, s48, {XB}
s_and_b32 s49, s42, 3               ; e
s_mul_i32 s49, s49, {16*2688}
s_lshr_b32 s50, s42, 2              ; part (0=k,1=v)
s_mul_i32 s50, s50, 896
s_add_u32 s50, s50, s49
s_add_u32 s50, s50, 896
s_lshl_b32 s51, s42, 10             ; wave*1024""")
    if OPT["rot"]:
        e("""s_lshl_b32 s52, s43, 1
s_add_u32 s52, s52, s41
s_cmp_ge_u32 s52, 7
s_cselect_b32 s53, 7, 0
s_sub_u32 s52, s52, s53""")
    else:
        e("s_mov_b32 s52, 0")
    e("s_mov_b32 s39, s52                  ; c0")
    e("""s_waitcnt lgkmcnt(0)
s_cmp_ge_u32 s40, 16
s_cselect_b32 s6, s12, s6
s_cselect_b32 s7, s13, s7""")
    srd(e, 20, 4, S*D*2)
    srd(e, 24, 6, D*3*D*2)
    srd(e, 28, 36, WS_SIZE)
    srd(e, 32, 16, D*2)
    def load_step(i):
        e(f"""s_add_u32 m0, s51, {i*8192}
s_mul_i32 s53, s52, {64*2688}
s_add_u32 s53, s53, s50
buffer_load_dwordx4 v2, s[24:27], s53 offen lds
s_lshl_b32 s54, s52, 7
s_add_u32 s54, s54, s47""")
        e.vmop(("W", i))
        for u in range(4):
            e(f"""s_add_u32 m0, s48, {(i%3)*32768 + u*1024}
s_add_u32 s53, s54, {u*8*896}
buffer_load_dwordx4 v{3 + (u%2)}, s[20:23], s53 offen lds""")
            e.vmop(("X", i))
        e("""s_add_u32 s52, s52, 1
s_cmp_eq_u32 s52, 7
s_cselect_b32 s52, 0, s52""")
    def load_wq(t):
        e(f"""s_lshr_b32 s53, s42, 2
s_add_u32 s53, s53, s39
s_add_u32 s53, s53, {2*t}
s_cmp_ge_u32 s53, 7
s_cselect_b32 s54, 7, 0
s_sub_u32 s53, s53, s54
s_mul_i32 s53, s53, {64*2688}
s_add_u32 s53, s53, s49""")
        if t == 3: e(f"s_cmp_ge_u32 s42, 4\ns_cselect_b32 s53, {hex(OOB)}, s53")
        e(f"s_add_u32 m0, s51, {t*8192}\ns_nop 0\nbuffer_load_dwordx4 v2, s[24:27], s53 offen lds")
        e.vmop(("Wq", t))
    load_step(0); e("s_barrier"); load_step(1); e("s_barrier"); load_step(2)
    e(f"""v_mov_b32 v8, 0
s_mov_b32 s53, {WS_E}
buffer_load_dword v248, v8, s[28:31], s53 offen sc1
s_lshl_b32 s55, s41, 8
s_lshl_b32 s56, s40, 3
s_add_u32 s55, s55, s56
s_add_u32 s55, s55, s42
s_mul_i32 s56, s55, 896
v_lshlrev_b32 v8, 4, v0
v_mov_b32 v9, {hex(OOB)}
v_cmp_gt_u32 vcc, 56, v0
s_nop 1
v_cndmask_b32 v9, v9, v8, vcc
buffer_load_dwordx4 v[240:243], v9, s[20:23], s56 offen
buffer_load_dwordx4 v[244:247], v9, s[32:35], 0 offen""")
    e.vmop("g", 3)
    if OPT["touch"]:
        srd(e, 60, 18, S*D*2)
        e(f"""v_mov_b32 v8, 0
s_lshl_b32 s53, s40, 18
buffer_load_dword v249, v8, s[28:31], s53 offen sc1
s_lshl_b32 s53, s41, 19
s_add_u32 s53, s53, {WS_O}
buffer_load_dword v249, v8, s[28:31], s53 offen sc1
s_and_b32 s54, s2, 7
s_lshl_b32 s53, s54, 19
s_add_u32 s53, s53, {WS_O}
buffer_load_dword v249, v8, s[28:31], s53 offen sc1
s_mul_i32 s53, s54, {256*896}
buffer_load_dword v249, v8, s[60:63], s53 offen sc1
s_add_u32 s53, s53, {256*896-4}
buffer_load_dword v249, v8, s[60:63], s53 offen sc1""")
        e.vmop("g", 5)
    e(f"""v_and_b32 v8, 31, v0               ; row
v_lshrrev_b32 v9, 5, v0             ; h
v_lshrrev_b32 v10, 1, v8
v_and_b32 v10, 7, v10               ; key
v_lshlrev_b32 v11, 7, v8
v_add_u32 v11, s48, v11""")
    for ee in range(4):
        e(f"""v_add_u32 v16, {2*ee}, v9
v_xor_b32 v16, v16, v10
v_lshl_add_u32 v{12+ee}, v16, 4, v11
v_add_u32 v{24+ee}, 65536, v{12+ee}""")
    e(f"""v_lshrrev_b32 v16, 2, v0
v_and_b32 v16, 3, v16               ; r
v_lshl_add_u32 v16, v9, 3, v16      ; 8h + r
v_lshlrev_b32 v16, 6, v16
v_lshrrev_b32 v17, 4, v0
v_and_b32 v17, 1, v17
v_lshl_add_u32 v16, v17, 5, v16
v_and_b32 v17, 3, v0
v_lshl_add_u32 v16, v17, 3, v16""")
    AQ, AK, AV, WF, XF = 32, 48, 64, 80, 128
    def wread(ks):
        b = WF + (ks % 2) * 8
        for p in range(2):
            off = (ks // 4) * 8192 + p * 4096 + (ks % 4) * 1024
            e(f"ds_read_b64_tr_b16 {vr(b+4*p, 2)}, v16 offset:{off}\nds_read_b64_tr_b16 {vr(b+4*p+2, 2)}, v16 offset:{off+256}")
    for i in range(7):
        e.vmwait(("X", i), ("W", i))
        e("s_barrier")
        if i in (0, 3): stamp(e, 1 + i//3, True)
        xb = XF + i * 16
        for ee in range(4):
            e(f"ds_read_b128 {vr(xb+4*ee, 4)}, v{(24 if i % 3 == 2 else 12)+ee} offset:{(i%3%2)*32768}")
        wread(4*i)
        for ee in range(4):
            ks = 4*i + ee
            if ee < 3:
                wread(ks+1); e("s_waitcnt lgkmcnt(4)")
            else:
                e("s_waitcnt lgkmcnt(0)")
            if ee == 0:
                if i + 3 < 7: load_step(i+3)
                if i == 4:
                    load_wq(0); load_wq(1)
                    if OPT["wqe"]: load_wq(2); load_wq(3)
            b = WF + (ks % 2) * 8
            x = vr(xb+4*ee, 4)
            z = ks == 0
            e(f"v_mfma_f32_32x32x16_bf16 {vr(AK,16)}, {vr(b,4)}, {x}, {'0' if z else vr(AK,16)}")
            e(f"v_mfma_f32_32x32x16_bf16 {vr(AV,16)}, {x}, {vr(b+4,4)}, {'0' if z else vr(AV,16)}")
    stamp(e, 3)
    e("v_mov_b32 v20, 0")
    for i in range(4):
        e(f"""v_lshlrev_b32 v18, 16, v{240+i}
v_lshlrev_b32 v19, 16, v{244+i}
v_fmac_f32 v20, v18, v19
v_and_b32 v18, 0xffff0000, v{240+i}
v_and_b32 v19, 0xffff0000, v{244+i}
v_fmac_f32 v20, v18, v19""")
    e("s_mov_b32 exec_lo, 0\ns_nop 0")
    for r in range(12, 16): e(f"v_mov_b32 v{AK+r}, 0")
    e("s_mov_b64 exec, -1\ns_nop 0")
    for r in range(8):
        e(f"v_cvt_pk_bf16_f32 v{96+r}, v{AK+2*r}, v{AK+2*r+1}")
    for r in range(8):
        e(f"v_cvt_pk_bf16_f32 v{104+r}, v{AV+2*r}, v{AV+2*r+1}")
    e("s_mov_b32 exec_lo, 0xf0000000\ns_mov_b32 exec_hi, 0xf0000000\nv_mov_b32 v18, 0x3f803f80")
    e("s_mov_b32 exec_lo, 0xe0000000\ns_mov_b32 exec_hi, 0xe0000000\nv_mov_b32 v18, 0")
    e("s_mov_b32 exec_lo, 0xf0000000\ns_mov_b32 exec_hi, 0xf0000000")
    for r in range(8): e(f"v_mov_b32 v{104+r}, v18")
    e(f"""s_mov_b64 exec, -1
v_lshlrev_b32 v5, 4, v0             ; v5 = lane*16
v_and_b32 v21, 0x33, v0
v_and_b32 v22, 4, v0
v_lshl_or_b32 v21, v22, 1, v21
v_and_b32 v22, 8, v0
v_lshrrev_b32 v22, 1, v22
v_or_b32 v21, v21, v22
v_lshlrev_b32 v21, 4, v21           ; swap23(lane)*16
s_lshr_b32 s58, s46, 5              ; tile
s_lshl_b32 s59, s40, 6
s_add_u32 s58, s58, s59
s_lshl_b32 s59, s58, 12
buffer_store_dwordx4 v[96:99], v21, s[28:31], s59 offen sc1
buffer_store_dwordx4 v[100:103], v21, s[28:31], s59 offen offset:1024 sc1
buffer_store_dwordx4 v[104:107], v5, s[28:31], s59 offen offset:2048 sc1
buffer_store_dwordx4 v[108:111], v5, s[28:31], s59 offen offset:3072 sc1
s_lshl_b32 s58, s42, 12
s_add_u32 s58, s58, {slot_base(0)}
v_add_u32 v21, s58, v21
v_add_u32 v22, s58, v5
ds_write_b128 v21, v[96:99]
ds_write_b128 v21, v[100:103] offset:1024
ds_write_b128 v22, v[104:107] offset:2048
ds_write_b128 v22, v[108:111] offset:3072""")
    e.vmop("kv", 4)
    for m in ("row_shr:1", "row_shr:2", "row_shr:4", "row_shr:8"):
        e(f"s_nop 1\nv_add_f32_dpp v20, v20, v20 {m} row_mask:0xf bank_mask:0xf bound_ctrl:0")
    e(f"""s_nop 1
v_readlane_b32 s60, v20, 15
v_readlane_b32 s61, v20, 31
v_readlane_b32 s62, v20, 47
v_readlane_b32 s63, v20, 63
v_readfirstlane_b32 s67, v248
s_nop 1
v_mov_b32 v20, s60
v_add_f32 v20, s61, v20
v_add_f32 v20, s62, v20
v_add_f32 v20, s63, v20
v_mul_f32 v20, {hex(f2u(-math.log2(math.e)))}, v20
v_exp_f32 v20, v20
s_mul_i32 s67, s67, 0x41c64e6d
v_add_f32 v20, 1.0, v20
v_rcp_f32 v20, v20
s_add_u32 s67, s67, 0x3039
s_lshl_b32 s55, s55, 2
s_add_u32 s55, s55, {WS_G}
v_mov_b32 v21, 0
s_mov_b64 exec, 1
buffer_store_dword v20, v21, s[28:31], s55 offen sc1
s_mov_b64 exec, -1""")
    e.vmop("kv", 1)
    if not OPT["wqe"]: load_wq(2); load_wq(3)
    def qread(ks):
        b = WF + (ks % 4) * 4
        e(f"ds_read_b64_tr_b16 {vr(b, 2)}, v16 offset:{ks*1024}\nds_read_b64_tr_b16 {vr(b+2, 2)}, v16 offset:{ks*1024+256}")
    def publish():
        e(f"""s_cmp_lg_u32 s42, 0
s_cbranch_scc1 L_nopub
s_lshl_b32 s53, s40, 3
s_add_u32 s53, s53, s41
s_lshl_b32 s53, s53, 7
s_add_u32 s53, s53, {WS_F1}
v_mov_b32 v20, s67
s_mov_b64 exec, 1
buffer_store_dword v20, v21, s[28:31], s53 offen sc1
s_mov_b64 exec, -1
L_nopub:""")
    for t in range(4):
        if t == OPT["pubt"]: e.vmwait(("Wq", t), "kv")
        else: e.vmwait(("Wq", t))
        e("s_barrier")
        if t == OPT["pubt"]:
            publish()
        kss = list(range(8*t, min(8*t+8, 28)))
        qread(kss[0]); qread(kss[1])
        for j, ks in enumerate(kss):
            if j + 2 < len(kss):
                qread(ks+2); e("s_waitcnt lgkmcnt(4)")
            else:
                e(f"s_waitcnt lgkmcnt({2*(len(kss)-1-j)})")
            e(f"v_mfma_f32_32x32x16_bf16 {vr(AQ,16)}, {vr(WF+(ks%4)*4,4)}, {vr(XF+4*ks,4)}, {'0' if ks == 0 else vr(AQ,16)}")
        if t == OPT["pubt"]: e.vm = [x for x in e.vm if x == ("Wq", 3)]
    stamp(e, 4)
    X = [32, 48, 64, 80]; O = [96, 112]; Q = [128, 136]; KF = [144, 152]; VF = [160, 168]; IDX = 176
    e(f"""s_and_b32 s44, s42, 3              ; qp
s_lshr_b32 s45, s42, 2              ; kh
s_lshl_b32 s46, s40, 18
s_lshl_b32 s47, s45, 14
s_lshl_b32 s48, s44, 10
s_add_u32 s47, s47, s48
s_add_u32 s49, s46, s47
s_lshl_b32 s50, s45, 14
s_add_u32 s50, s50, 65536
v_add_u32 v3, s50, v5
v_add_u32 v4, 65536, v3             ; slot U4
s_lshl_b32 s53, s42, 11
s_add_u32 s53, s53, {QX}
v_add_u32 v6, s53, v5
s_lshl_b32 s53, s44, 12
s_add_u32 s53, s53, {QX}
v_add_u32 v7, s53, v5
v_lshlrev_b32 v8, 7, v0
s_mov_b32 s57, {hex(f2u(CSCALE))}""")
    e(f"""s_lshr_b32 s62, s2, 3
s_mul_i32 s61, s62, 0x2493
s_lshr_b32 s61, s61, 16
s_mul_i32 s63, s61, 7
s_sub_u32 s62, s62, s63
s_cmp_lt_u32 s2, 224
s_cselect_b32 s63, {D*D*2}, 0""")
    srd(e, 20, 8, "s63"); srd(e, 24, 14, "s63")
    e(f"""v_lshrrev_b32 v10, 3, v0
v_mul_u32_u24 v11, 896, v10
v_and_b32 v12, 7, v0
v_and_b32 v10, 2, v10
v_lshlrev_b32 v10, 1, v10
v_xor_b32 v12, v12, v10
v_lshl_add_u32 v2, v12, 4, v11
s_mul_i32 s63, s42, {8*896}
s_lshl_b32 s64, s62, 7
s_add_u32 s63, s63, s64""")
    for r in range(16): e(f"v_mul_f32 v{AQ+r}, s57, v{AQ+r}")
    for r in range(8): e(f"v_cvt_pk_bf16_f32 v{80+r}, v{AQ+2*r}, v{AQ+2*r+1}")
    e("s_mov_b32 exec_lo, 0\nv_mov_b32 v86, 0\nv_mov_b32 v87, 0\ns_mov_b64 exec, -1")
    e(f"ds_write_b128 v6, v[80:83]\nds_write_b128 v6, v[84:87] offset:1024\nv_mov_b32 v{IDX}, 0xdddddddd")
    for r in range(32): e(f"v_mov_b32 v{O[0]+r}, 0")
    if OPT["pubt"] == 4: e("s_waitcnt vmcnt(0)")
    e("s_waitcnt lgkmcnt(0)\ns_barrier")
    for i in range(4): e(f"ds_read_b128 {vr(Q[0]+4*i,4)}, v7 offset:{1024*i}")
    if OPT["pubt"] == 4: publish()
    def dma(c):
        e(f"s_add_u32 s54, s41, {c}\ns_and_b32 s54, s54, 7\ns_lshl_b32 s54, s54, 15\ns_add_u32 s54, s54, s49")
        for u in range(4):
            e(f"""s_add_u32 m0, s47, {slot_base(c) + u*4096}
s_add_u32 s53, s54, {u*4096}
buffer_load_dwordx4 v5, s[28:31], s53 offen {"sc1 " if OPT["kvsc"] else ""}lds""")
            e.vmop(("KV", c))
    def wo(t, touch=None):
        r = "s[20:23]" if t < 7 else "s[24:27]"
        if touch is None:
            e(f"s_add_u32 m0, s51, {t*8192}\ns_add_u32 s53, s63, {(t%7)*64*896}\nbuffer_load_dwordx4 v2, {r}, s53 offen lds")
        else:
            e(f"s_add_u32 s53, s63, {(t%7)*64*896}\nbuffer_load_dwordx4 {vr(touch,4)}, v2, {r}, s53 offen")
        e.vmop("wo")
    def lds(t):
        c, u = t // 4, t % 4
        sb = slot_base(c)
        return ("v4", u*4096) if sb == 131072 else ("v3", sb - 65536 + u * 4096)
    def rdK(t):
        a, o = lds(t)
        e(f"ds_read_b128 {vr(KF[t%2],4)}, {a} offset:{o}\nds_read_b128 {vr(KF[t%2]+4,4)}, {a} offset:{o+1024}")
    def rdV(t):
        a, o = lds(t)
        e(f"ds_read_b128 {vr(VF[t%2],4)}, {a} offset:{o+2048}\nds_read_b128 {vr(VF[t%2]+4,4)}, {a} offset:{o+3072}")
    def Smm(n, i):
        t, a = n // 2, n % 2
        d = vr(X[n%4], 16)
        e(f"v_mfma_f32_32x32x16_bf16 {d}, {vr(KF[t%2]+4*i,4)}, {vr(Q[a]+4*i,4)}, {'0' if i == 0 else d}")
    def PV(n, i):
        t, a = n // 2, n % 2
        e(f"v_smfmac_f32_32x32x32_bf16 {vr(O[a],16)}, {vr(VF[t%2]+4*i,4)}, {vr(X[n%4]+8*i,8)}, v{IDX}")
    def ex(n, r0):
        for r in range(r0, r0+4): e(f"v_exp_f32 v{X[n%4]+r}, v{X[n%4]+r}")
    rdK(0)
    e("s_waitcnt lgkmcnt(0)")
    Smm(0, 0); Smm(0, 1)
    e("s_nop 15")
    NT = 32
    for n in range(2*NT):
        t, a = n // 2, n % 2
        if a == 0:
            if t == OPT["pollt"]:
                e(f"s_lshl_b32 s53, s40, 10\ns_add_u32 s53, s53, {WS_F1}")
                poll(e, "L_poll1", "v8", "s53", 8)
                stamp(e, 5)
                dma(1); dma(2)
            if t % 4 == 3 and t + 1 < NT:
                c1 = (t + 1) // 4
                e.vmwait(("KV", c1))
                e("s_barrier")
                if c1 == 1: stamp(e, 6)
                if 2 <= c1 < 7: dma(c1 + 1)
                if c1 <= 4: wo(2*c1 - 2); wo(2*c1 - 1)
                if c1 in (5, 6):
                    for k in range(3): wo(8 + 3*(c1-5) + k, 180 + 4*k)
                if c1 == 7:
                    for k in range(8, 12): wo(k)
            if t + 1 < NT: rdK(t+1)
            rdV(t)
        else:
            e("s_waitcnt lgkmcnt(0)")
        if n + 1 < 2*NT: Smm(n+1, 0)
        ex(n, 0)
        if n + 1 < 2*NT: Smm(n+1, 1)
        ex(n, 4)
        if n > 0: PV(n-1, 0)
        ex(n, 8)
        if n > 0: PV(n-1, 1)
        ex(n, 12)
    e("s_nop 1")
    PV(2*NT-1, 0); PV(2*NT-1, 1)
    stamp(e, 7); stamp_flush(e, 0, 8); stamp(e, 0)
    e(f"""s_barrier
s_lshl_b32 s54, s42, 12
s_add_u32 s54, s54, 131072
v_add_u32 v6, s54, v5
s_xor_b32 s54, s54, 16384
v_add_u32 v7, s54, v5
s_nop 7
s_cmp_eq_u32 s45, 0
s_cbranch_scc1 L_k0""")
    for i in range(4): e(f"ds_write_b128 v6, {vr(O[0]+4*i,4)} offset:{1024*i}")
    for r in range(16): e(f"v_mov_b32 v{X[0]+r}, v{O[1]+r}")
    for r in range(8): e(f"v_mov_b32 v{Q[0]+r}, v{Q[1]+r}")
    e(f"s_branch L_k1\nL_k0:")
    for i in range(4): e(f"ds_write_b128 v6, {vr(O[1]+4*i,4)} offset:{1024*i}")
    for r in range(16): e(f"v_mov_b32 v{X[0]+r}, v{O[0]+r}")
    e(f"L_k1:\ns_waitcnt lgkmcnt(0)\ns_barrier")
    for i in range(4): e(f"ds_read_b128 {vr(X[1]+4*i,4)}, v7 offset:{1024*i}")
    e("s_waitcnt lgkmcnt(0)")
    A = X[0]
    for r in range(16): e(f"v_add_f32 v{A+r}, v{A+r}, v{X[1]+r}")
    e(f"""v_mov_b32 v10, v{A+12}
v_mov_b32 v9, v{A+12}
v_add_f32 v11, abs(v{A}), abs(v{A+1})
v_add_f32 v11, abs(v{A+2}), v11
v_permlane32_swap_b32 v10, v9""")
    for r in range(3, 16): e(f"v_add_f32 v11, abs(v{A+r}), v11")
    e(f"""s_mov_b32 s56, {hex(f2u(2.0**-16))}
s_mov_b32 s57, {hex(f2u(2.0**64))}
s_mov_b32 s58, {hex(f2u(2.0**126))}
v_cmp_le_f32 s[64:65], s56, v9
v_cmp_ge_f32 vcc, s57, v9
s_and_b64 s[64:65], s[64:65], vcc
v_cmp_ge_f32 vcc, s58, v11
s_and_b64 s[64:65], s[64:65], vcc
s_cmp_eq_u64 s[64:65], exec
s_cbranch_scc0 L_fallback
L_fin:
v_rcp_f32 v9, v9
s_nop 0""")
    for r in range(16): e(f"v_mul_f32 v{A+r}, v9, v{A+r}")
    for r in range(8): e(f"v_cvt_pk_bf16_f32 v{X[1]+r}, v{A+2*r}, v{A+2*r+1}")
    e(f"s_mov_b32 exec_lo, 0\nv_mov_b32 v{X[1]+6}, 0\nv_mov_b32 v{X[1]+7}, 0\ns_mov_b64 exec, -1")
    e(f"""s_lshl_b32 s52, s41, 3
s_lshl_b32 s53, s44, 1
s_add_u32 s52, s52, s53
s_add_u32 s52, s52, s45
s_lshl_b32 s52, s52, 5
s_add_u32 s52, s52, s40
s_lshl_b32 s53, s52, 11
s_add_u32 s53, s53, {WS_O}
buffer_store_dwordx4 {vr(X[1],4)}, v5, s[28:31], s53 offen sc1
buffer_store_dwordx4 {vr(X[1]+4,4)}, v5, s[28:31], s53 offen offset:1024 sc1""")
    e.vmop("o", 2)
    wo(12); wo(13)
    stamp(e, 1)
    e(f"""s_lshl_b32 s52, s52, 7
s_add_u32 s52, s52, {WS_F2}
v_mov_b32 v20, s67
v_mov_b32 v21, 0""")
    e.vmwait("o")
    e(f"""s_mov_b64 exec, 1
buffer_store_dword v20, v21, s[28:31], s52 offen sc1
s_mov_b64 exec, -1
s_cmp_ge_u32 s2, 224
s_cbranch_scc1 L_end""")
    stamp(e, 2)
    OF = 64
    srd(e, 32, 18, S*D*2)
    e(f"""s_and_b32 s44, s42, 1               ; ri
s_lshr_b32 s45, s42, 1              ; kq
s_and_b32 s46, s2, 7
s_lshl_b32 s46, s46, 3
s_lshl_b32 s47, s61, 1
s_add_u32 s46, s46, s47
s_add_u32 s46, s46, s44
s_lshl_b32 s47, s46, 2
s_add_u32 s47, s47, s45
s_lshl_b32 s48, s47, 10
s_add_u32 s48, s48, {WS_F2}
s_lshl_b32 s47, s47, 14
s_add_u32 s47, s47, {WS_O}
v_and_b32 v6, 31, v0
v_lshlrev_b32 v7, 2, v6
v_lshrrev_b32 v18, 5, v0            ; h
v_lshrrev_b32 v9, 2, v0
v_and_b32 v9, 3, v9                 ; r
v_lshlrev_b32 v12, 7, v9
v_lshrrev_b32 v9, 1, v9
v_lshl_add_u32 v12, v9, 6, v12
v_lshrrev_b32 v9, 4, v0
v_and_b32 v9, 1, v9
v_lshl_add_u32 v12, v9, 5, v12
v_and_b32 v9, 3, v0
v_lshl_add_u32 v12, v9, 3, v12
s_mul_i32 s54, s45, 28672
v_add_u32 v12, s54, v12
v_xor_b32 v13, 64, v12
v_lshl_add_u32 v10, v18, 9, v12
v_xor_b32 v11, 64, v10""")
    poll(e, "L_poll2", "v8", "s48", 8)
    stamp(e, 3)
    for u in range(16):
        if u % 4 == 0: e(f"s_add_u32 s53, s47, {(u//4)*4096}")
        e(f"buffer_load_dwordx4 {vr(OF+4*u,4)}, v5, s[28:31], s53 offen offset:{(u%4)*1024} sc1")
        e.vmop(("of", u))
    e("s_barrier")
    e(f"""s_lshl_b32 s53, s46, 7
s_add_u32 s53, s53, {WS_G}
buffer_load_dword v19, v7, s[28:31], s53 offen sc1""")
    e.vmop("g")
    AC = [32, 48]; WF = 128
    def wread3(f):
        b = WF + (f % 2) * 8
        k0 = 28 * (f // 2) + 16 * (f % 2)
        for ci in range(2):
            e(f"ds_read_b64_tr_b16 {vr(b+4*ci,2)}, v{10+ci} offset:{k0*128}\nds_read_b64_tr_b16 {vr(b+4*ci+2,2)}, v{(12 if f % 2 else 10)+ci} offset:{(k0+8)*128}")
    wread3(0)
    for f in range(16):
        if f < 15:
            wread3(f+1); e("s_waitcnt lgkmcnt(4)")
        else: e("s_waitcnt lgkmcnt(0)")
        e.vmwait(("of", f))
        b = WF + (f % 2) * 8
        for ci in range(2):
            e(f"v_mfma_f32_32x32x16_bf16 {vr(AC[ci],16)}, {vr(b+4*ci,4)}, {vr(OF+4*f,4)}, {'0' if f == 0 else vr(AC[ci],16)}")
    stamp(e, 4)
    e(f"""s_waitcnt vmcnt(0)
v_sub_f32 v13, 1.0, v19
s_cmp_ge_u32 s42, 4
s_cselect_b64 vcc, -1, 0
s_barrier
v_cndmask_b32 v12, v19, v13, vcc
s_lshl_b32 s54, s42, 13
v_add_u32 v14, s54, v5
s_nop 7""")
    for r in range(32): e(f"v_mul_f32 v{32+r}, v12, v{32+r}")
    for pi in range(4):
        e(f"ds_write_b128 v14, {vr(32+8*pi,4)} offset:{pi*2048}\nds_write_b128 v14, {vr(36+8*pi,4)} offset:{pi*2048+1024}")
    e(f"""s_lshl_b32 s54, s44, 13
s_lshl_b32 s55, s45, 11
s_add_u32 s54, s54, s55
v_add_u32 v14, s54, v5
s_waitcnt lgkmcnt(0)
s_barrier""")
    for q in range(4):
        e(f"ds_read_b128 {vr(64+8*q,4)}, v14 offset:{q*16384}\nds_read_b128 {vr(68+8*q,4)}, v14 offset:{q*16384+1024}")
    e(f"""v_mul_u32_u24 v15, 896, v6
v_lshl_add_u32 v15, v18, 4, v15
s_mul_i32 s54, s46, {32*896}
s_lshl_b32 s55, s62, 7
s_add_u32 s54, s54, s55
s_lshl_b32 s55, s45, 5
s_add_u32 s54, s54, s55
s_waitcnt lgkmcnt(0)""")
    for r in range(8):
        e(f"v_add_f32 v{64+r}, v{64+r}, v{72+r}\nv_add_f32 v{80+r}, v{80+r}, v{88+r}")
    for r in range(8): e(f"v_add_f32 v{64+r}, v{64+r}, v{80+r}")
    for r in range(4): e(f"v_cvt_pk_bf16_f32 v{96+r}, v{64+2*r}, v{64+2*r+1}")
    e(f"""s_nop 1
v_permlane32_swap_b32 v96, v98
v_permlane32_swap_b32 v97, v99
buffer_store_dwordx4 v[96:99], v15, s[32:35], s54 offen""")
    stamp(e, 5)
    if STAMP: e("s_waitcnt vmcnt(0)")
    stamp(e, 6); stamp_flush(e, 1, 7)
    e(f"""s_or_b32 s53, s2, s42
s_cmp_lg_u32 s53, 0
s_cbranch_scc1 L_end
s_mov_b32 s53, {WS_E}
s_mov_b64 exec, 1
buffer_store_dword v20, v21, s[28:31], s53 offen sc1
L_end:
s_endpgm""")
    Sx, M = X[1], X[2]
    e(f"""L_fallback:
v_mov_b32 v10, 0xff800000
s_mov_b32 s56, s46
s_add_u32 s57, s46, 262144
L_fb1:
buffer_load_dwordx4 {vr(KF[0],4)}, v5, s[28:31], s56 offen sc1
buffer_load_dwordx4 {vr(KF[0]+4,4)}, v5, s[28:31], s56 offen offset:1024 sc1
s_waitcnt vmcnt(0)
v_mfma_f32_32x32x16_bf16 {vr(Sx,16)}, {vr(KF[0],4)}, {vr(Q[0],4)}, 0
v_mfma_f32_32x32x16_bf16 {vr(Sx,16)}, {vr(KF[0]+4,4)}, {vr(Q[0]+4,4)}, {vr(Sx,16)}
s_nop 15""")
    for r in range(0, 16, 2): e(f"v_max3_f32 v10, v{Sx+r}, v{Sx+r+1}, v10")
    e(f"""s_add_u32 s56, s56, 4096
s_cmp_lt_u32 s56, s57
s_cbranch_scc1 L_fb1
v_mov_b32 v11, v10
s_nop 1
v_permlane32_swap_b32 v10, v11
s_nop 1
v_max_f32 v10, v10, v11""")
    for r in range(16): e(f"v_sub_f32 v{M+r}, 0, v10\nv_mov_b32 v{A+r}, 0")
    e(f"""s_mov_b32 s56, s46
L_fb2:
buffer_load_dwordx4 {vr(KF[0],4)}, v5, s[28:31], s56 offen sc1
buffer_load_dwordx4 {vr(KF[0]+4,4)}, v5, s[28:31], s56 offen offset:1024 sc1
buffer_load_dwordx4 {vr(VF[0],4)}, v5, s[28:31], s56 offen offset:2048 sc1
buffer_load_dwordx4 {vr(VF[0]+4,4)}, v5, s[28:31], s56 offen offset:3072 sc1
s_waitcnt vmcnt(0)
v_mfma_f32_32x32x16_bf16 {vr(Sx,16)}, {vr(KF[0],4)}, {vr(Q[0],4)}, {vr(M,16)}
v_mfma_f32_32x32x16_bf16 {vr(Sx,16)}, {vr(KF[0]+4,4)}, {vr(Q[0]+4,4)}, {vr(Sx,16)}
s_nop 15""")
    for r in range(16): e(f"v_exp_f32 v{Sx+r}, v{Sx+r}")
    e(f"""s_nop 1
v_smfmac_f32_32x32x32_bf16 {vr(A,16)}, {vr(VF[0],4)}, {vr(Sx,8)}, v{IDX}
v_smfmac_f32_32x32x32_bf16 {vr(A,16)}, {vr(VF[0]+4,4)}, {vr(Sx+8,8)}, v{IDX}
s_add_u32 s56, s56, 4096
s_cmp_lt_u32 s56, s57
s_cbranch_scc1 L_fb2
s_nop 15
v_mov_b32 v10, v{A+12}
v_mov_b32 v9, v{A+12}
s_nop 1
v_permlane32_swap_b32 v10, v9
s_nop 1
s_branch L_fin""")

def main(out):
    e = E()
    hdr = open("cdna_kernels/" + NAME + ".s.ref").read().split("; Override launch")[0]
    e.L.append(hdr.rstrip("\n"))
    e.L.append(f"; @launch grid=(256,1,1) block=(512,1,1) lds={LDS}")
    e('.amdgcn_target "amdgcn-amd-amdhsa--gfx950"\n.text')
    kn = NAME + "_kernel"
    kernel(e, kn)
    t = e.text() + f""".section .rodata,"a"
.p2align 6
.amdhsa_kernel {kn}
  .amdhsa_next_free_vgpr 256
  .amdhsa_next_free_sgpr 102
  .amdhsa_accum_offset 256
  .amdhsa_group_segment_fixed_size 0
  .amdhsa_kernarg_size 80
  .amdhsa_user_sgpr_count 2
  .amdhsa_user_sgpr_kernarg_segment_ptr 1
  .amdhsa_system_sgpr_workgroup_id_x 1
  .amdhsa_float_denorm_mode_32 3
.end_amdhsa_kernel
"""
    open(out, "w").write(t)
if __name__ == "__main__":
    args = sys.argv[1:]
    if "--stamp" in args: STAMP = True; args.remove("--stamp")
    for a in list(args):
        if "=" in a:
            k, v = a.split("="); OPT[k] = int(v); args.remove(a)
    main(args[0] if args else "cdna_kernels/" + NAME + ".s")
```

```python
import sys, math, struct
NAME = "gated_mix__mha_block__mha_block__prompt"
S, D, H, DH = 2048, 448, 16, 28
WS_KV, WS_O, WS_G, WS_F1, WS_F2, WS_E = 0, 8 << 20, (12 << 20) + (320 << 10), (12 << 20) + (256 << 10), 12 << 20, (12 << 20) + (384 << 10)
WS_SIZE = 268435456
CSCALE = math.log2(math.e) / math.sqrt(DH)
OOB = 0x7ff00000
SPIN = 1 << 17
OPT = dict(rot=1, pollt=1, wqe=1, pubt=3, kvsc=1, touch=0, padp=-1, fine=0, outsc=0, padt=0, dbg=-1)
def f2u(x): return struct.unpack("<I", struct.pack("<f", x))[0]

class E:
    def __init__(s): s.L = []; s.vm = []
    def __call__(s, t):
        for l in t.strip("\n").split("\n"):
            if not l.strip(): continue
            s.L.append(l if l.rstrip().endswith(":") or l.startswith(".") else "    " + l.strip())
    def vmop(s, tag, n=1): s.vm += [tag] * n
    def vmwait(s, *tags):
        need = max(i for i, o in enumerate(s.vm) if o in tags)
        n = len(s.vm) - 1 - need
        assert n < 64
        s(f"s_waitcnt vmcnt({n})")
    def text(s): return "\n".join(s.L) + "\n"

STAMP = False
NST = [0]
def stamp(e, i, wait=False):
    k = NST[0]; NST[0] += 1
    if OPT["padp"] >= 0:
        if k == 0: e("s_memrealtime s[68:69]")
        if k == OPT["padp"]:
            e(f"""L_pad:
s_memrealtime s[70:71]
s_waitcnt lgkmcnt(0)
s_sub_u32 s70, s70, s68
s_cmp_lt_u32 s70, {OPT["padt"]}
s_cbranch_scc1 L_pad""")
    if not STAMP: return
    e(f"s_memtime s[{68+4*i}:{69+4*i}]\ns_memrealtime s[{70+4*i}:{71+4*i}]")
    if wait: e("s_waitcnt lgkmcnt(0)")
def stamp_flush(e, kk, n):
    if not STAMP: return
    if OPT["dbg"] >= 0:
        e(f"""s_waitcnt lgkmcnt(0)
{"s_mov_b32 s38, s70" if kk == 0 else ""}
s_lshl_b32 s66, s2, 3
s_add_u32 s66, s66, s42
s_cmp_lg_u32 s66, {OPT["dbg"]*8}
s_cbranch_scc1 L_dbg{kk}
s_load_dwordx2 s[100:101], s[0:1], 64
v_mov_b32 v250, 0
s_mov_b64 exec, 1
s_waitcnt lgkmcnt(0)""")
        for i in range(n):
            e(f"s_sub_u32 s66, s{70+4*i}, s38\nv_mov_b32 v252, s66\nglobal_store_dword v250, v252, s[100:101] offset:{32*kk+4*i}\ns_nop 1")
        e(f"s_waitcnt vmcnt(0)\ns_mov_b64 exec, -1\nL_dbg{kk}:")
        return
    e(f"""s_waitcnt lgkmcnt(0)
s_lshl_b32 s66, s2, 3
s_add_u32 s66, s66, s42
s_lshl_b32 s66, s66, 6
s_add_u32 s66, s66, {(32<<20) + kk*256*8*64}
v_mov_b32 v250, 0
s_mov_b64 exec, 1""")
    for i in range(n):
        e(f"v_mov_b32 v252, s{68+4*i}\nv_mov_b32 v253, s{70+4*i}\nbuffer_store_dwordx2 v[252:253], v250, s[28:31], s66 offen offset:{8*i}\ns_nop 1")
        e.vmop("st")
    e("s_mov_b64 exec, -1")
def vr(a, n): return f"v[{a}:{a+n-1}]"
def srd(e, d, b, size):
    e(f"s_mov_b32 s{d}, s{b}\ns_mov_b32 s{d+1}, s{b+1}\ns_mov_b32 s{d+2}, {size}\ns_mov_b32 s{d+3}, 0x00020000")

LDS = 163840
XB = 57344
QX = 32768
def slot_base(i): return (4 - (7 - i) % 3) * 32768

def poll(e, label, vaddr, soff, nl):
    e(f"""s_mov_b32 s60, {SPIN}
s_mov_b64 exec, {hex((1 << nl) - 1)}
{label}:
buffer_load_dword v9, {vaddr}, s[28:31], {soff} offen sc1
s_sub_u32 s60, s60, 1
s_cbranch_scc1 {label}_x
s_waitcnt vmcnt(0)
v_cmp_ne_u32 vcc, s67, v9
s_cbranch_vccnz {label}
{label}_x:
s_mov_b64 exec, -1""")
    e.vm = []

def kernel(e, name):
    e(f".globl {name}\n.p2align 8\n.type {name},@function\n{name}:")
    e(f"s_cmp_ge_u32 s2, 256\ns_cbranch_scc1 L_end")
    stamp(e, 0)
    e("s_load_dwordx16 s[4:19], s[0:1], 0\ns_load_dwordx2 s[36:37], s[0:1], 72")
    e("""s_and_b32 s40, s2, 7
s_lshl_b32 s40, s40, 2
s_lshr_b32 s41, s2, 3
s_and_b32 s43, s41, 3
s_add_u32 s40, s40, s43             ; hh
s_lshr_b32 s41, s41, 2              ; b
v_lshrrev_b32 v1, 6, v0
v_and_b32 v0, 63, v0
v_readfirstlane_b32 s42, v1         ; wave""")
    e(f"""s_and_b32 s44, s40, 15            ; head
s_mul_i32 s45, s44, 56
v_lshrrev_b32 v2, 2, v0
v_mul_u32_u24 v2, 2688, v2
v_and_b32 v3, 3, v0
v_lshl_add_u32 v2, v3, 4, v2
v_add_u32 v2, s45, v2               ; v2 = W voffset
v_lshrrev_b32 v3, 3, v0
v_mul_u32_u24 v4, 896, v3
v_lshrrev_b32 v5, 4, v0
v_and_b32 v6, 7, v0
v_xor_b32 v7, v6, v5
v_lshl_add_u32 v3, v7, 4, v4
v_xor_b32 v7, 4, v7
v_lshl_add_u32 v4, v7, 4, v4
s_lshl_b32 s46, s41, 8
s_lshl_b32 s47, s42, 5
s_add_u32 s46, s46, s47
s_mul_i32 s47, s46, 896
s_lshl_b32 s48, s42, 12
s_add_u32 s48, s48, {XB}
s_and_b32 s49, s42, 3               ; e
s_mul_i32 s49, s49, {16*2688}
s_lshr_b32 s50, s42, 2              ; part (0=k,1=v)
s_mul_i32 s50, s50, 896
s_add_u32 s50, s50, s49
s_add_u32 s50, s50, 896
s_lshl_b32 s51, s42, 10             ; wave*1024""")
    if OPT["rot"]:
        e("""s_lshl_b32 s52, s43, 1
s_add_u32 s52, s52, s41
s_cmp_ge_u32 s52, 7
s_cselect_b32 s53, 7, 0
s_sub_u32 s52, s52, s53""")
    else:
        e("s_mov_b32 s52, 0")
    e("s_mov_b32 s39, s52                  ; c0")
    if OPT["fine"]: stamp(e, 1)
    e("s_waitcnt lgkmcnt(0)")
    if OPT["fine"]: stamp(e, 2)
    e("""s_cmp_ge_u32 s40, 16
s_cselect_b32 s6, s12, s6
s_cselect_b32 s7, s13, s7""")
    srd(e, 20, 4, S*D*2)
    srd(e, 24, 6, D*3*D*2)
    srd(e, 28, 36, WS_SIZE)
    srd(e, 32, 16, D*2)
    def load_step(i):
        e(f"""s_add_u32 m0, s51, {i*8192}
s_mul_i32 s53, s52, {64*2688}
s_add_u32 s53, s53, s50
buffer_load_dwordx4 v2, s[24:27], s53 offen lds
s_lshl_b32 s54, s52, 7
s_add_u32 s54, s54, s47""")
        e.vmop(("W", i))
        for u in range(4):
            e(f"""s_add_u32 m0, s48, {(i%3)*32768 + u*1024}
s_add_u32 s53, s54, {u*8*896}
buffer_load_dwordx4 v{3 + (u%2)}, s[20:23], s53 offen lds""")
            e.vmop(("X", i))
        e("""s_add_u32 s52, s52, 1
s_cmp_eq_u32 s52, 7
s_cselect_b32 s52, 0, s52""")
    def load_wq(t):
        e(f"""s_lshr_b32 s53, s42, 2
s_add_u32 s53, s53, s39
s_add_u32 s53, s53, {2*t}
s_cmp_ge_u32 s53, 7
s_cselect_b32 s54, 7, 0
s_sub_u32 s53, s53, s54
s_mul_i32 s53, s53, {64*2688}
s_add_u32 s53, s53, s49""")
        if t == 3: e(f"s_cmp_ge_u32 s42, 4\ns_cselect_b32 s53, {hex(OOB)}, s53")
        e(f"s_add_u32 m0, s51, {t*8192}\ns_nop 0\nbuffer_load_dwordx4 v2, s[24:27], s53 offen lds")
        e.vmop(("Wq", t))
    load_step(0)
    if OPT["fine"]: stamp(e, 3)
    e("s_barrier"); load_step(1); e("s_barrier"); load_step(2)
    if OPT["fine"]: stamp(e, 4)
    e(f"""v_mov_b32 v8, 0
s_mov_b32 s53, {WS_E}
buffer_load_dword v248, v8, s[28:31], s53 offen sc1
s_lshl_b32 s55, s41, 8
s_lshl_b32 s56, s40, 3
s_add_u32 s55, s55, s56
s_add_u32 s55, s55, s42
s_mul_i32 s56, s55, 896
v_lshlrev_b32 v8, 4, v0
v_mov_b32 v9, {hex(OOB)}
v_cmp_gt_u32 vcc, 56, v0
s_nop 1
v_cndmask_b32 v9, v9, v8, vcc
buffer_load_dwordx4 v[240:243], v9, s[20:23], s56 offen
buffer_load_dwordx4 v[244:247], v9, s[32:35], 0 offen""")
    e.vmop("g", 3)
    if OPT["touch"]:
        srd(e, 60, 18, S*D*2)
        e(f"""v_mov_b32 v8, 0
s_lshl_b32 s53, s40, 18
buffer_load_dword v249, v8, s[28:31], s53 offen sc1
s_lshl_b32 s53, s41, 19
s_add_u32 s53, s53, {WS_O}
buffer_load_dword v249, v8, s[28:31], s53 offen sc1
s_and_b32 s54, s2, 7
s_lshl_b32 s53, s54, 19
s_add_u32 s53, s53, {WS_O}
buffer_load_dword v249, v8, s[28:31], s53 offen sc1
s_mul_i32 s53, s54, {256*896}
buffer_load_dword v249, v8, s[60:63], s53 offen sc1
s_add_u32 s53, s53, {256*896-4}
buffer_load_dword v249, v8, s[60:63], s53 offen sc1""")
        e.vmop("g", 5)
    e(f"""v_and_b32 v8, 31, v0               ; row
v_lshrrev_b32 v9, 5, v0             ; h
v_lshrrev_b32 v10, 1, v8
v_and_b32 v10, 7, v10               ; key
v_lshlrev_b32 v11, 7, v8
v_add_u32 v11, s48, v11""")
    for ee in range(4):
        e(f"""v_add_u32 v16, {2*ee}, v9
v_xor_b32 v16, v16, v10
v_lshl_add_u32 v{12+ee}, v16, 4, v11
v_add_u32 v{24+ee}, 65536, v{12+ee}""")
    e(f"""v_lshrrev_b32 v16, 2, v0
v_and_b32 v16, 3, v16               ; r
v_lshl_add_u32 v16, v9, 3, v16      ; 8h + r
v_lshlrev_b32 v16, 6, v16
v_lshrrev_b32 v17, 4, v0
v_and_b32 v17, 1, v17
v_lshl_add_u32 v16, v17, 5, v16
v_and_b32 v17, 3, v0
v_lshl_add_u32 v16, v17, 3, v16""")
    AQ, AK, AV, WF, XF = 32, 48, 64, 80, 128
    def wread(ks):
        b = WF + (ks % 2) * 8
        for p in range(2):
            off = (ks // 4) * 8192 + p * 4096 + (ks % 4) * 1024
            e(f"ds_read_b64_tr_b16 {vr(b+4*p, 2)}, v16 offset:{off}\nds_read_b64_tr_b16 {vr(b+4*p+2, 2)}, v16 offset:{off+256}")
    for i in range(7):
        if OPT["fine"] and i == 0:
            e.vmwait(("W", i)); stamp(e, 5)
        e.vmwait(("X", i), ("W", i))
        if OPT["fine"] and i == 0: stamp(e, 6)
        e("s_barrier")
        if OPT["fine"]:
            if i == 0: stamp(e, 7, True)
        elif i in (0, 3): stamp(e, 1 + i//3, True)
        xb = XF + i * 16
        for ee in range(4):
            e(f"ds_read_b128 {vr(xb+4*ee, 4)}, v{(24 if i % 3 == 2 else 12)+ee} offset:{(i%3%2)*32768}")
        wread(4*i)
        for ee in range(4):
            ks = 4*i + ee
            if ee < 3:
                wread(ks+1); e("s_waitcnt lgkmcnt(4)")
            else:
                e("s_waitcnt lgkmcnt(0)")
            if ee == 0:
                if i + 3 < 7: load_step(i+3)
                if i == 4:
                    load_wq(0); load_wq(1)
                    if OPT["wqe"]: load_wq(2); load_wq(3)
            b = WF + (ks % 2) * 8
            x = vr(xb+4*ee, 4)
            z = ks == 0
            e(f"v_mfma_f32_32x32x16_bf16 {vr(AK,16)}, {vr(b,4)}, {x}, {'0' if z else vr(AK,16)}")
            e(f"v_mfma_f32_32x32x16_bf16 {vr(AV,16)}, {x}, {vr(b+4,4)}, {'0' if z else vr(AV,16)}")
    if not OPT["fine"]: stamp(e, 3)
    e("v_mov_b32 v20, 0")
    for i in range(4):
        e(f"""v_lshlrev_b32 v18, 16, v{240+i}
v_lshlrev_b32 v19, 16, v{244+i}
v_fmac_f32 v20, v18, v19
v_and_b32 v18, 0xffff0000, v{240+i}
v_and_b32 v19, 0xffff0000, v{244+i}
v_fmac_f32 v20, v18, v19""")
    e("s_mov_b32 exec_lo, 0\ns_nop 0")
    for r in range(12, 16): e(f"v_mov_b32 v{AK+r}, 0")
    e("s_mov_b64 exec, -1\ns_nop 0")
    for r in range(8):
        e(f"v_cvt_pk_bf16_f32 v{96+r}, v{AK+2*r}, v{AK+2*r+1}")
    for r in range(8):
        e(f"v_cvt_pk_bf16_f32 v{104+r}, v{AV+2*r}, v{AV+2*r+1}")
    e("s_mov_b32 exec_lo, 0xf0000000\ns_mov_b32 exec_hi, 0xf0000000\nv_mov_b32 v18, 0x3f803f80")
    e("s_mov_b32 exec_lo, 0xe0000000\ns_mov_b32 exec_hi, 0xe0000000\nv_mov_b32 v18, 0")
    e("s_mov_b32 exec_lo, 0xf0000000\ns_mov_b32 exec_hi, 0xf0000000")
    for r in range(8): e(f"v_mov_b32 v{104+r}, v18")
    e(f"""s_mov_b64 exec, -1
v_lshlrev_b32 v5, 4, v0             ; v5 = lane*16
v_and_b32 v21, 0x33, v0
v_and_b32 v22, 4, v0
v_lshl_or_b32 v21, v22, 1, v21
v_and_b32 v22, 8, v0
v_lshrrev_b32 v22, 1, v22
v_or_b32 v21, v21, v22
v_lshlrev_b32 v21, 4, v21           ; swap23(lane)*16
s_lshr_b32 s58, s46, 5              ; tile
s_lshl_b32 s59, s40, 6
s_add_u32 s58, s58, s59
s_lshl_b32 s59, s58, 12
buffer_store_dwordx4 v[96:99], v21, s[28:31], s59 offen sc1
buffer_store_dwordx4 v[100:103], v21, s[28:31], s59 offen offset:1024 sc1
buffer_store_dwordx4 v[104:107], v5, s[28:31], s59 offen offset:2048 sc1
buffer_store_dwordx4 v[108:111], v5, s[28:31], s59 offen offset:3072 sc1
s_lshl_b32 s58, s42, 12
s_add_u32 s58, s58, {slot_base(0)}
v_add_u32 v21, s58, v21
v_add_u32 v22, s58, v5
ds_write_b128 v21, v[96:99]
ds_write_b128 v21, v[100:103] offset:1024
ds_write_b128 v22, v[104:107] offset:2048
ds_write_b128 v22, v[108:111] offset:3072""")
    e.vmop("kv", 4)
    for m in ("row_shr:1", "row_shr:2", "row_shr:4", "row_shr:8"):
        e(f"s_nop 1\nv_add_f32_dpp v20, v20, v20 {m} row_mask:0xf bank_mask:0xf bound_ctrl:0")
    e(f"""s_nop 1
v_readlane_b32 s60, v20, 15
v_readlane_b32 s61, v20, 31
v_readlane_b32 s62, v20, 47
v_readlane_b32 s63, v20, 63
v_readfirstlane_b32 s67, v248
s_nop 1
v_mov_b32 v20, s60
v_add_f32 v20, s61, v20
v_add_f32 v20, s62, v20
v_add_f32 v20, s63, v20
v_mul_f32 v20, {hex(f2u(-math.log2(math.e)))}, v20
v_exp_f32 v20, v20
s_mul_i32 s67, s67, 0x41c64e6d
v_add_f32 v20, 1.0, v20
v_rcp_f32 v20, v20
s_add_u32 s67, s67, 0x3039
s_lshl_b32 s55, s55, 2
s_add_u32 s55, s55, {WS_G}
v_mov_b32 v21, 0
s_mov_b64 exec, 1
buffer_store_dword v20, v21, s[28:31], s55 offen sc1
s_mov_b64 exec, -1""")
    e.vmop("kv", 1)
    if not OPT["wqe"]: load_wq(2); load_wq(3)
    def qread(ks):
        b = WF + (ks % 4) * 4
        e(f"ds_read_b64_tr_b16 {vr(b, 2)}, v16 offset:{ks*1024}\nds_read_b64_tr_b16 {vr(b+2, 2)}, v16 offset:{ks*1024+256}")
    def publish():
        e(f"""s_cmp_lg_u32 s42, 0
s_cbranch_scc1 L_nopub
s_lshl_b32 s53, s40, 3
s_add_u32 s53, s53, s41
s_lshl_b32 s53, s53, 7
s_add_u32 s53, s53, {WS_F1}
v_mov_b32 v20, s67
s_mov_b64 exec, 1
buffer_store_dword v20, v21, s[28:31], s53 offen sc1
s_mov_b64 exec, -1
L_nopub:""")
    for t in range(4):
        if t == OPT["pubt"]: e.vmwait(("Wq", t), "kv")
        else: e.vmwait(("Wq", t))
        e("s_barrier")
        if t == OPT["pubt"]:
            publish()
        kss = list(range(8*t, min(8*t+8, 28)))
        qread(kss[0]); qread(kss[1])
        for j, ks in enumerate(kss):
            if j + 2 < len(kss):
                qread(ks+2); e("s_waitcnt lgkmcnt(4)")
            else:
                e(f"s_waitcnt lgkmcnt({2*(len(kss)-1-j)})")
            e(f"v_mfma_f32_32x32x16_bf16 {vr(AQ,16)}, {vr(WF+(ks%4)*4,4)}, {vr(XF+4*ks,4)}, {'0' if ks == 0 else vr(AQ,16)}")
        if t == OPT["pubt"]: e.vm = [x for x in e.vm if x == ("Wq", 3)]
    if not OPT["fine"]: stamp(e, 4)
    X = [32, 48, 64, 80]; O = [96, 112]; Q = [128, 136]; KF = [144, 152]; VF = [160, 168]; IDX = 176
    e(f"""s_and_b32 s44, s42, 3              ; qp
s_lshr_b32 s45, s42, 2              ; kh
s_lshl_b32 s46, s40, 18
s_lshl_b32 s47, s45, 14
s_lshl_b32 s48, s44, 10
s_add_u32 s47, s47, s48
s_add_u32 s49, s46, s47
s_lshl_b32 s50, s45, 14
s_add_u32 s50, s50, 65536
v_add_u32 v3, s50, v5
v_add_u32 v4, 65536, v3             ; slot U4
s_lshl_b32 s53, s42, 11
s_add_u32 s53, s53, {QX}
v_add_u32 v6, s53, v5
s_lshl_b32 s53, s44, 12
s_add_u32 s53, s53, {QX}
v_add_u32 v7, s53, v5
v_lshlrev_b32 v8, 7, v0
s_mov_b32 s57, {hex(f2u(CSCALE))}""")
    e(f"""s_lshr_b32 s62, s2, 3
s_mul_i32 s61, s62, 0x2493
s_lshr_b32 s61, s61, 16
s_mul_i32 s63, s61, 7
s_sub_u32 s62, s62, s63
s_cmp_lt_u32 s2, 224
s_cselect_b32 s63, {D*D*2}, 0""")
    srd(e, 20, 8, "s63"); srd(e, 24, 14, "s63")
    e(f"""v_lshrrev_b32 v10, 3, v0
v_mul_u32_u24 v11, 896, v10
v_and_b32 v12, 7, v0
v_and_b32 v10, 2, v10
v_lshlrev_b32 v10, 1, v10
v_xor_b32 v12, v12, v10
v_lshl_add_u32 v2, v12, 4, v11
s_mul_i32 s63, s42, {8*896}
s_lshl_b32 s64, s62, 7
s_add_u32 s63, s63, s64""")
    for r in range(16): e(f"v_mul_f32 v{AQ+r}, s57, v{AQ+r}")
    for r in range(8): e(f"v_cvt_pk_bf16_f32 v{80+r}, v{AQ+2*r}, v{AQ+2*r+1}")
    e("s_mov_b32 exec_lo, 0\nv_mov_b32 v86, 0\nv_mov_b32 v87, 0\ns_mov_b64 exec, -1")
    e(f"ds_write_b128 v6, v[80:83]\nds_write_b128 v6, v[84:87] offset:1024\nv_mov_b32 v{IDX}, 0xdddddddd")
    for r in range(32): e(f"v_mov_b32 v{O[0]+r}, 0")
    if OPT["pubt"] == 4: e("s_waitcnt vmcnt(0)")
    e("s_waitcnt lgkmcnt(0)\ns_barrier")
    for i in range(4): e(f"ds_read_b128 {vr(Q[0]+4*i,4)}, v7 offset:{1024*i}")
    if OPT["pubt"] == 4: publish()
    def dma(c):
        e(f"s_add_u32 s54, s41, {c}\ns_and_b32 s54, s54, 7\ns_lshl_b32 s54, s54, 15\ns_add_u32 s54, s54, s49")
        for u in range(4):
            e(f"""s_add_u32 m0, s47, {slot_base(c) + u*4096}
s_add_u32 s53, s54, {u*4096}
buffer_load_dwordx4 v5, s[28:31], s53 offen {"sc1 " if OPT["kvsc"] else ""}lds""")
            e.vmop(("KV", c))
    def wo(t, touch=None):
        r = "s[20:23]" if t < 7 else "s[24:27]"
        if touch is None:
            e(f"s_add_u32 m0, s51, {t*8192}\ns_add_u32 s53, s63, {(t%7)*64*896}\nbuffer_load_dwordx4 v2, {r}, s53 offen lds")
        else:
            e(f"s_add_u32 s53, s63, {(t%7)*64*896}\nbuffer_load_dwordx4 {vr(touch,4)}, v2, {r}, s53 offen")
        e.vmop("wo")
    def lds(t):
        c, u = t // 4, t % 4
        sb = slot_base(c)
        return ("v4", u*4096) if sb == 131072 else ("v3", sb - 65536 + u * 4096)
    def rdK(t):
        a, o = lds(t)
        e(f"ds_read_b128 {vr(KF[t%2],4)}, {a} offset:{o}\nds_read_b128 {vr(KF[t%2]+4,4)}, {a} offset:{o+1024}")
    def rdV(t):
        a, o = lds(t)
        e(f"ds_read_b128 {vr(VF[t%2],4)}, {a} offset:{o+2048}\nds_read_b128 {vr(VF[t%2]+4,4)}, {a} offset:{o+3072}")
    def Smm(n, i):
        t, a = n // 2, n % 2
        d = vr(X[n%4], 16)
        e(f"v_mfma_f32_32x32x16_bf16 {d}, {vr(KF[t%2]+4*i,4)}, {vr(Q[a]+4*i,4)}, {'0' if i == 0 else d}")
    def PV(n, i):
        t, a = n // 2, n % 2
        e(f"v_smfmac_f32_32x32x32_bf16 {vr(O[a],16)}, {vr(VF[t%2]+4*i,4)}, {vr(X[n%4]+8*i,8)}, v{IDX}")
    def ex(n, r0):
        for r in range(r0, r0+4): e(f"v_exp_f32 v{X[n%4]+r}, v{X[n%4]+r}")
    rdK(0)
    e("s_waitcnt lgkmcnt(0)")
    Smm(0, 0); Smm(0, 1)
    e("s_nop 15")
    NT = 32
    for n in range(2*NT):
        t, a = n // 2, n % 2
        if a == 0:
            if t == OPT["pollt"]:
                e(f"s_lshl_b32 s53, s40, 10\ns_add_u32 s53, s53, {WS_F1}")
                poll(e, "L_poll1", "v8", "s53", 8)
                if not OPT["fine"]: stamp(e, 5)
                dma(1); dma(2)
            if t % 4 == 3 and t + 1 < NT:
                c1 = (t + 1) // 4
                e.vmwait(("KV", c1))
                e("s_barrier")
                if c1 == 1 and not OPT["fine"]: stamp(e, 6)
                if 2 <= c1 < 7: dma(c1 + 1)
                if c1 <= 4: wo(2*c1 - 2); wo(2*c1 - 1)
                if c1 in (5, 6):
                    for k in range(3): wo(8 + 3*(c1-5) + k, 180 + 4*k)
                if c1 == 7:
                    for k in range(8, 12): wo(k)
            if t + 1 < NT: rdK(t+1)
            rdV(t)
        else:
            e("s_waitcnt lgkmcnt(0)")
        if n + 1 < 2*NT: Smm(n+1, 0)
        ex(n, 0)
        if n + 1 < 2*NT: Smm(n+1, 1)
        ex(n, 4)
        if n > 0: PV(n-1, 0)
        ex(n, 8)
        if n > 0: PV(n-1, 1)
        ex(n, 12)
    e("s_nop 1")
    PV(2*NT-1, 0); PV(2*NT-1, 1)
    if not OPT["fine"]: stamp(e, 7)
    stamp_flush(e, 0, 8); stamp(e, 0)
    e(f"""s_barrier
s_lshl_b32 s54, s42, 12
s_add_u32 s54, s54, 131072
v_add_u32 v6, s54, v5
s_xor_b32 s54, s54, 16384
v_add_u32 v7, s54, v5
s_nop 7
s_cmp_eq_u32 s45, 0
s_cbranch_scc1 L_k0""")
    for i in range(4): e(f"ds_write_b128 v6, {vr(O[0]+4*i,4)} offset:{1024*i}")
    for r in range(16): e(f"v_mov_b32 v{X[0]+r}, v{O[1]+r}")
    for r in range(8): e(f"v_mov_b32 v{Q[0]+r}, v{Q[1]+r}")
    e(f"s_branch L_k1\nL_k0:")
    for i in range(4): e(f"ds_write_b128 v6, {vr(O[1]+4*i,4)} offset:{1024*i}")
    for r in range(16): e(f"v_mov_b32 v{X[0]+r}, v{O[0]+r}")
    e(f"L_k1:\ns_waitcnt lgkmcnt(0)\ns_barrier")
    for i in range(4): e(f"ds_read_b128 {vr(X[1]+4*i,4)}, v7 offset:{1024*i}")
    e("s_waitcnt lgkmcnt(0)")
    A = X[0]
    for r in range(16): e(f"v_add_f32 v{A+r}, v{A+r}, v{X[1]+r}")
    e(f"""v_mov_b32 v10, v{A+12}
v_mov_b32 v9, v{A+12}
v_add_f32 v11, abs(v{A}), abs(v{A+1})
v_add_f32 v11, abs(v{A+2}), v11
v_permlane32_swap_b32 v10, v9""")
    for r in range(3, 16): e(f"v_add_f32 v11, abs(v{A+r}), v11")
    e(f"""s_mov_b32 s56, {hex(f2u(2.0**-16))}
s_mov_b32 s57, {hex(f2u(2.0**64))}
s_mov_b32 s58, {hex(f2u(2.0**126))}
v_cmp_le_f32 s[64:65], s56, v9
v_cmp_ge_f32 vcc, s57, v9
s_and_b64 s[64:65], s[64:65], vcc
v_cmp_ge_f32 vcc, s58, v11
s_and_b64 s[64:65], s[64:65], vcc
s_cmp_eq_u64 s[64:65], exec
s_cbranch_scc0 L_fallback
L_fin:
v_rcp_f32 v9, v9
s_nop 0""")
    for r in range(16): e(f"v_mul_f32 v{A+r}, v9, v{A+r}")
    for r in range(8): e(f"v_cvt_pk_bf16_f32 v{X[1]+r}, v{A+2*r}, v{A+2*r+1}")
    e(f"s_mov_b32 exec_lo, 0\nv_mov_b32 v{X[1]+6}, 0\nv_mov_b32 v{X[1]+7}, 0\ns_mov_b64 exec, -1")
    e(f"""s_lshl_b32 s52, s41, 3
s_lshl_b32 s53, s44, 1
s_add_u32 s52, s52, s53
s_add_u32 s52, s52, s45
s_lshl_b32 s52, s52, 5
s_add_u32 s52, s52, s40
s_lshl_b32 s53, s52, 11
s_add_u32 s53, s53, {WS_O}
buffer_store_dwordx4 {vr(X[1],4)}, v5, s[28:31], s53 offen sc1
buffer_store_dwordx4 {vr(X[1]+4,4)}, v5, s[28:31], s53 offen offset:1024 sc1""")
    e.vmop("o", 2)
    wo(12); wo(13)
    stamp(e, 1)
    e(f"""s_lshl_b32 s52, s52, 7
s_add_u32 s52, s52, {WS_F2}
v_mov_b32 v20, s67
v_mov_b32 v21, 0""")
    e.vmwait("o")
    e(f"""s_mov_b64 exec, 1
buffer_store_dword v20, v21, s[28:31], s52 offen sc1
s_mov_b64 exec, -1
s_cmp_ge_u32 s2, 224
s_cbranch_scc1 L_end""")
    stamp(e, 2)
    OF = 64
    srd(e, 32, 18, S*D*2)
    e(f"""s_and_b32 s44, s42, 1               ; ri
s_lshr_b32 s45, s42, 1              ; kq
s_and_b32 s46, s2, 7
s_lshl_b32 s46, s46, 3
s_lshl_b32 s47, s61, 1
s_add_u32 s46, s46, s47
s_add_u32 s46, s46, s44
s_lshl_b32 s47, s46, 2
s_add_u32 s47, s47, s45
s_lshl_b32 s48, s47, 10
s_add_u32 s48, s48, {WS_F2}
s_lshl_b32 s47, s47, 14
s_add_u32 s47, s47, {WS_O}
v_and_b32 v6, 31, v0
v_lshlrev_b32 v7, 2, v6
v_lshrrev_b32 v18, 5, v0            ; h
v_lshrrev_b32 v9, 2, v0
v_and_b32 v9, 3, v9                 ; r
v_lshlrev_b32 v12, 7, v9
v_lshrrev_b32 v9, 1, v9
v_lshl_add_u32 v12, v9, 6, v12
v_lshrrev_b32 v9, 4, v0
v_and_b32 v9, 1, v9
v_lshl_add_u32 v12, v9, 5, v12
v_and_b32 v9, 3, v0
v_lshl_add_u32 v12, v9, 3, v12
s_mul_i32 s54, s45, 28672
v_add_u32 v12, s54, v12
v_xor_b32 v13, 64, v12
v_lshl_add_u32 v10, v18, 9, v12
v_xor_b32 v11, 64, v10""")
    poll(e, "L_poll2", "v8", "s48", 8)
    stamp(e, 3)
    for u in range(16):
        if u % 4 == 0: e(f"s_add_u32 s53, s47, {(u//4)*4096}")
        e(f"buffer_load_dwordx4 {vr(OF+4*u,4)}, v5, s[28:31], s53 offen offset:{(u%4)*1024} sc1")
        e.vmop(("of", u))
    e("s_barrier")
    e(f"""s_lshl_b32 s53, s46, 7
s_add_u32 s53, s53, {WS_G}
buffer_load_dword v19, v7, s[28:31], s53 offen sc1""")
    e.vmop("g")
    AC = [32, 48]; WF = 128
    def wread3(f):
        b = WF + (f % 2) * 8
        k0 = 28 * (f // 2) + 16 * (f % 2)
        for ci in range(2):
            e(f"ds_read_b64_tr_b16 {vr(b+4*ci,2)}, v{10+ci} offset:{k0*128}\nds_read_b64_tr_b16 {vr(b+4*ci+2,2)}, v{(12 if f % 2 else 10)+ci} offset:{(k0+8)*128}")
    wread3(0)
    for f in range(16):
        if f < 15:
            wread3(f+1); e("s_waitcnt lgkmcnt(4)")
        else: e("s_waitcnt lgkmcnt(0)")
        e.vmwait(("of", f))
        b = WF + (f % 2) * 8
        for ci in range(2):
            e(f"v_mfma_f32_32x32x16_bf16 {vr(AC[ci],16)}, {vr(b+4*ci,4)}, {vr(OF+4*f,4)}, {'0' if f == 0 else vr(AC[ci],16)}")
    stamp(e, 4)
    e(f"""s_waitcnt vmcnt(0)
v_sub_f32 v13, 1.0, v19
s_cmp_ge_u32 s42, 4
s_cselect_b64 vcc, -1, 0
s_barrier
v_cndmask_b32 v12, v19, v13, vcc
s_lshl_b32 s54, s42, 13
v_add_u32 v14, s54, v5
s_nop 7""")
    for r in range(32): e(f"v_mul_f32 v{32+r}, v12, v{32+r}")
    for pi in range(4):
        e(f"ds_write_b128 v14, {vr(32+8*pi,4)} offset:{pi*2048}\nds_write_b128 v14, {vr(36+8*pi,4)} offset:{pi*2048+1024}")
    e(f"""s_lshl_b32 s54, s44, 13
s_lshl_b32 s55, s45, 11
s_add_u32 s54, s54, s55
v_add_u32 v14, s54, v5
s_waitcnt lgkmcnt(0)
s_barrier""")
    for q in range(4):
        e(f"ds_read_b128 {vr(64+8*q,4)}, v14 offset:{q*16384}\nds_read_b128 {vr(68+8*q,4)}, v14 offset:{q*16384+1024}")
    e(f"""v_mul_u32_u24 v15, 896, v6
v_lshl_add_u32 v15, v18, 4, v15
s_mul_i32 s54, s46, {32*896}
s_lshl_b32 s55, s62, 7
s_add_u32 s54, s54, s55
s_lshl_b32 s55, s45, 5
s_add_u32 s54, s54, s55
s_waitcnt lgkmcnt(0)""")
    for r in range(8):
        e(f"v_add_f32 v{64+r}, v{64+r}, v{72+r}\nv_add_f32 v{80+r}, v{80+r}, v{88+r}")
    for r in range(8): e(f"v_add_f32 v{64+r}, v{64+r}, v{80+r}")
    for r in range(4): e(f"v_cvt_pk_bf16_f32 v{96+r}, v{64+2*r}, v{64+2*r+1}")
    e(f"""s_nop 1
v_permlane32_swap_b32 v96, v98
v_permlane32_swap_b32 v97, v99
buffer_store_dwordx4 v[96:99], v15, s[32:35], s54 offen{["", " sc1", " nt", " sc0 sc1"][OPT["outsc"]]}""")
    stamp(e, 5)
    if STAMP: e("s_waitcnt vmcnt(0)")
    stamp(e, 6); stamp_flush(e, 1, 7)
    e(f"""s_or_b32 s53, s2, s42
s_cmp_lg_u32 s53, 0
s_cbranch_scc1 L_end
s_mov_b32 s53, {WS_E}
s_mov_b64 exec, 1
buffer_store_dword v20, v21, s[28:31], s53 offen sc1
L_end:
s_endpgm""")
    Sx, M = X[1], X[2]
    e(f"""L_fallback:
v_mov_b32 v10, 0xff800000
s_mov_b32 s56, s46
s_add_u32 s57, s46, 262144
L_fb1:
buffer_load_dwordx4 {vr(KF[0],4)}, v5, s[28:31], s56 offen sc1
buffer_load_dwordx4 {vr(KF[0]+4,4)}, v5, s[28:31], s56 offen offset:1024 sc1
s_waitcnt vmcnt(0)
v_mfma_f32_32x32x16_bf16 {vr(Sx,16)}, {vr(KF[0],4)}, {vr(Q[0],4)}, 0
v_mfma_f32_32x32x16_bf16 {vr(Sx,16)}, {vr(KF[0]+4,4)}, {vr(Q[0]+4,4)}, {vr(Sx,16)}
s_nop 15""")
    for r in range(0, 16, 2): e(f"v_max3_f32 v10, v{Sx+r}, v{Sx+r+1}, v10")
    e(f"""s_add_u32 s56, s56, 4096
s_cmp_lt_u32 s56, s57
s_cbranch_scc1 L_fb1
v_mov_b32 v11, v10
s_nop 1
v_permlane32_swap_b32 v10, v11
s_nop 1
v_max_f32 v10, v10, v11""")
    for r in range(16): e(f"v_sub_f32 v{M+r}, 0, v10\nv_mov_b32 v{A+r}, 0")
    e(f"""s_mov_b32 s56, s46
L_fb2:
buffer_load_dwordx4 {vr(KF[0],4)}, v5, s[28:31], s56 offen sc1
buffer_load_dwordx4 {vr(KF[0]+4,4)}, v5, s[28:31], s56 offen offset:1024 sc1
buffer_load_dwordx4 {vr(VF[0],4)}, v5, s[28:31], s56 offen offset:2048 sc1
buffer_load_dwordx4 {vr(VF[0]+4,4)}, v5, s[28:31], s56 offen offset:3072 sc1
s_waitcnt vmcnt(0)
v_mfma_f32_32x32x16_bf16 {vr(Sx,16)}, {vr(KF[0],4)}, {vr(Q[0],4)}, {vr(M,16)}
v_mfma_f32_32x32x16_bf16 {vr(Sx,16)}, {vr(KF[0]+4,4)}, {vr(Q[0]+4,4)}, {vr(Sx,16)}
s_nop 15""")
    for r in range(16): e(f"v_exp_f32 v{Sx+r}, v{Sx+r}")
    e(f"""s_nop 1
v_smfmac_f32_32x32x32_bf16 {vr(A,16)}, {vr(VF[0],4)}, {vr(Sx,8)}, v{IDX}
v_smfmac_f32_32x32x32_bf16 {vr(A,16)}, {vr(VF[0]+4,4)}, {vr(Sx+8,8)}, v{IDX}
s_add_u32 s56, s56, 4096
s_cmp_lt_u32 s56, s57
s_cbranch_scc1 L_fb2
s_nop 15
v_mov_b32 v10, v{A+12}
v_mov_b32 v9, v{A+12}
s_nop 1
v_permlane32_swap_b32 v10, v9
s_nop 1
s_branch L_fin""")

def main(out):
    e = E()
    hdr = open("cdna_kernels/" + NAME + ".s.ref").read().split("; Override launch")[0]
    e.L.append(hdr.rstrip("\n"))
    e.L.append(f"; @launch grid=(256,1,1) block=(512,1,1) lds={LDS}")
    e('.amdgcn_target "amdgcn-amd-amdhsa--gfx950"\n.text')
    kn = NAME + "_kernel"
    kernel(e, kn)
    t = e.text() + f""".section .rodata,"a"
.p2align 6
.amdhsa_kernel {kn}
  .amdhsa_next_free_vgpr 256
  .amdhsa_next_free_sgpr 102
  .amdhsa_accum_offset 256
  .amdhsa_group_segment_fixed_size 0
  .amdhsa_kernarg_size 80
  .amdhsa_user_sgpr_count 2
  .amdhsa_user_sgpr_kernarg_segment_ptr 1
  .amdhsa_system_sgpr_workgroup_id_x 1
  .amdhsa_float_denorm_mode_32 3
.end_amdhsa_kernel
"""
    open(out, "w").write(t)
if __name__ == "__main__":
    args = sys.argv[1:]
    if "--stamp" in args: STAMP = True; args.remove("--stamp")
    for a in list(args):
        if "=" in a:
            k, v = a.split("="); OPT[k] = int(v); args.remove(a)
    main(args[0] if args else "cdna_kernels/" + NAME + ".s")
```

```python
import sys, math, struct
NAME = "gated_mix__mha_block__mha_block__prompt"
S, D, H, DH = 2048, 448, 16, 28
WS_KV, WS_O, WS_G, WS_F1, WS_F2, WS_E = 0, 8 << 20, (12 << 20) + (320 << 10), (12 << 20) + (256 << 10), 12 << 20, (12 << 20) + (384 << 10)
WS_SIZE = 268435456
CSCALE = math.log2(math.e) / math.sqrt(DH)
OOB = 0x7ff00000
SPIN = 1 << 17
OPT = dict(rot=1, pollt=1, drip=1, prio=0, diag=0, wqpf=0, map=1, wqpl=5, bar0=1, dist=2, place=0, qgrp=2, ride0=100, ride=8, nopq=4, wqe=1, pubt=2, kvsc=1, touch=0, padp=-1, fine=0, outsc=0, padt=0, dbg=-1)
def f2u(x): return struct.unpack("<I", struct.pack("<f", x))[0]

class E:
    def __init__(s): s.L = []; s.vm = []
    def __call__(s, t):
        for l in t.strip("\n").split("\n"):
            if not l.strip(): continue
            s.L.append(l if l.rstrip().endswith(":") or l.startswith(".") else "    " + l.strip())
    def vmop(s, tag, n=1): s.vm += [tag] * n
    def vmwait(s, *tags):
        need = max(i for i, o in enumerate(s.vm) if o in tags)
        n = len(s.vm) - 1 - need
        assert n < 64
        s(f"s_waitcnt vmcnt({n})")
    def text(s): return "\n".join(s.L) + "\n"

STAMP = False
NST = [0]
def stamp(e, i, wait=False):
    k = NST[0]; NST[0] += 1
    if OPT["padp"] >= 0:
        if k == 0: e("s_memrealtime s[68:69]")
        if k == OPT["padp"]:
            e(f"""L_pad:
s_memrealtime s[70:71]
s_waitcnt lgkmcnt(0)
s_sub_u32 s70, s70, s68
s_cmp_lt_u32 s70, {OPT["padt"]}
s_cbranch_scc1 L_pad""")
    if not STAMP: return
    e(f"s_memtime s[{68+4*i}:{69+4*i}]\ns_memrealtime s[{70+4*i}:{71+4*i}]")
    if wait: e("s_waitcnt lgkmcnt(0)")
def stamp_flush(e, kk, n):
    if not STAMP: return
    if OPT["dbg"] >= 0:
        e(f"""s_waitcnt lgkmcnt(0)
{"s_mov_b32 s38, s70" if kk == 0 else ""}
s_lshl_b32 s66, s2, 3
s_add_u32 s66, s66, s42
s_cmp_lg_u32 s66, {OPT["dbg"]*8}
s_cbranch_scc1 L_dbg{kk}
s_load_dwordx2 s[100:101], s[0:1], 64
v_mov_b32 v250, 0
s_mov_b64 exec, 1
s_waitcnt lgkmcnt(0)""")
        for i in range(n):
            e(f"s_sub_u32 s66, s{70+4*i}, s38\nv_mov_b32 v252, s66\nglobal_store_dword v250, v252, s[100:101] offset:{32*kk+4*i}\ns_nop 1")
        e(f"s_waitcnt vmcnt(0)\ns_mov_b64 exec, -1\nL_dbg{kk}:")
        return
    e(f"""s_waitcnt lgkmcnt(0)
s_lshl_b32 s66, s2, 3
s_add_u32 s66, s66, s42
s_lshl_b32 s66, s66, 6
s_add_u32 s66, s66, {(32<<20) + kk*256*8*64}
v_mov_b32 v250, 0
s_mov_b64 exec, 1""")
    for i in range(n):
        e(f"v_mov_b32 v252, s{68+4*i}\nv_mov_b32 v253, s{70+4*i}\nbuffer_store_dwordx2 v[252:253], v250, s[28:31], s66 offen offset:{8*i}\ns_nop 1")
        e.vmop("st")
    e("s_mov_b64 exec, -1")
def vr(a, n): return f"v[{a}:{a+n-1}]"
def srd(e, d, b, size):
    e(f"s_mov_b32 s{d}, s{b}\ns_mov_b32 s{d+1}, s{b+1}\ns_mov_b32 s{d+2}, {size}\ns_mov_b32 s{d+3}, 0x00020000")

LDS = 163840
XB = 57344
QX = 32768
def slot_base(i): return (4 - (7 - i) % 3) * 32768

def poll(e, label, vaddr, soff, nl):
    e(f"""s_mov_b32 s60, {SPIN}
s_mov_b64 exec, {hex((1 << nl) - 1)}
{label}:
buffer_load_dword v9, {vaddr}, s[28:31], {soff} offen sc1
s_sub_u32 s60, s60, 1
s_cbranch_scc1 {label}_x
s_waitcnt vmcnt(0)
v_cmp_ne_u32 vcc, s67, v9
s_cbranch_vccnz {label}
{label}_x:
s_mov_b64 exec, -1""")
    e.vm = []

def kernel(e, name):
    e(f".globl {name}\n.p2align 8\n.type {name},@function\n{name}:")
    e(f"s_cmp_ge_u32 s2, 256\ns_cbranch_scc1 L_end")
    stamp(e, 0)
    e("s_load_dwordx16 s[4:19], s[0:1], 0\ns_load_dwordx2 s[36:37], s[0:1], 72")
    if OPT["map"] == 0:
        e("""s_and_b32 s40, s2, 7
s_lshl_b32 s40, s40, 2
s_lshr_b32 s41, s2, 3
s_and_b32 s43, s41, 3
s_add_u32 s40, s40, s43             ; hh
s_lshr_b32 s41, s41, 2              ; b
s_lshl_b32 s52, s43, 1
s_add_u32 s52, s52, s41""")
    elif OPT["map"] == 1:
        e("""s_and_b32 s40, s2, 3
s_lshl_b32 s40, s40, 3
s_lshr_b32 s41, s2, 3
s_and_b32 s43, s41, 7
s_add_u32 s40, s40, s43             ; hh
s_lshr_b32 s41, s41, 3
s_lshl_b32 s52, s41, 1
s_add_u32 s52, s52, s43
s_and_b32 s43, s2, 4
s_add_u32 s41, s41, s43             ; b""")
    else:
        e("""s_and_b32 s40, s2, 1
s_lshl_b32 s40, s40, 4
s_lshr_b32 s41, s2, 3
s_and_b32 s43, s41, 15
s_add_u32 s40, s40, s43             ; hh
s_lshr_b32 s41, s41, 4
s_mul_i32 s52, s41, 3
s_and_b32 s43, s43, 7
s_add_u32 s52, s52, s43
s_and_b32 s43, s2, 6
s_add_u32 s41, s41, s43             ; b""")
    e("""v_lshrrev_b32 v1, 6, v0
v_and_b32 v0, 63, v0
v_readfirstlane_b32 s42, v1         ; wave""")
    e(f"""s_and_b32 s44, s40, 15            ; head
s_mul_i32 s45, s44, 56
v_lshrrev_b32 v2, 2, v0
v_mul_u32_u24 v2, 2688, v2
v_and_b32 v3, 3, v0
v_lshl_add_u32 v2, v3, 4, v2
v_add_u32 v2, s45, v2               ; v2 = W voffset
v_lshrrev_b32 v3, 3, v0
v_mul_u32_u24 v4, 896, v3
v_lshrrev_b32 v5, 4, v0
v_and_b32 v6, 7, v0
v_xor_b32 v7, v6, v5
v_lshl_add_u32 v3, v7, 4, v4
v_xor_b32 v7, 4, v7
v_lshl_add_u32 v4, v7, 4, v4
s_lshl_b32 s46, s41, 8
s_lshl_b32 s47, s42, 5
s_add_u32 s46, s46, s47
s_mul_i32 s47, s46, 896
s_lshl_b32 s48, s42, 12
s_add_u32 s48, s48, {XB}
s_and_b32 s49, s42, 3               ; e
s_mul_i32 s49, s49, {16*2688}
s_lshr_b32 s50, s42, 2              ; part (0=k,1=v)
s_mul_i32 s50, s50, 896
s_add_u32 s50, s50, s49
s_add_u32 s50, s50, 896
s_lshl_b32 s51, s42, 10             ; wave*1024""")
    if OPT["rot"]:
        e("""s_cmp_ge_u32 s52, 7
s_cselect_b32 s53, 7, 0
s_sub_u32 s52, s52, s53""")
    else:
        e("s_mov_b32 s52, 0")
    e("s_mov_b32 s39, s52                  ; c0")
    if OPT["fine"] == 1: stamp(e, 1)
    e("s_waitcnt lgkmcnt(0)")
    if OPT["fine"] == 1: stamp(e, 2)
    e("""s_cmp_ge_u32 s40, 16
s_cselect_b32 s6, s12, s6
s_cselect_b32 s7, s13, s7""")
    srd(e, 20, 4, S*D*2)
    srd(e, 24, 6, D*3*D*2)
    srd(e, 28, 36, WS_SIZE)
    srd(e, 32, 16, D*2)
    def load_wq(t):
        e(f"""s_lshr_b32 s53, s42, 2
s_add_u32 s53, s53, s39
s_add_u32 s53, s53, {2*t}
s_cmp_ge_u32 s53, 7
s_cselect_b32 s54, 7, 0
s_sub_u32 s53, s53, s54
s_mul_i32 s53, s53, {64*2688}
s_add_u32 s53, s53, s49""")
        if t == 3: e(f"s_cmp_ge_u32 s42, 4\ns_cselect_b32 s53, {hex(OOB)}, s53")
        e(f"s_add_u32 m0, s51, {t*8192}\ns_nop 0\nbuffer_load_dwordx4 v2, s[24:27], s53 offen lds")
        e.vmop(("Wq", t))
    def ld_step(i):
        def w():
            e(f"""s_add_u32 m0, s51, {i*8192}
s_mul_i32 s53, s52, {64*2688}
s_add_u32 s53, s53, s50
buffer_load_dwordx4 v2, s[24:27], s53 offen lds
s_lshl_b32 s54, s52, 7
s_add_u32 s54, s54, s47
s_add_u32 s52, s52, 1
s_cmp_eq_u32 s52, 7
s_cselect_b32 s52, 0, s52""")
            e.vmop(("W", i))
        def x(u):
            def f():
                e(f"""s_add_u32 m0, s48, {(i%3)*32768 + u*1024}
s_add_u32 s53, s54, {u*8*896}
buffer_load_dwordx4 v{3 + (u%2)}, s[20:23], s53 offen lds""")
                e.vmop(("X", i))
            return f
        return [w] + [x(u) for u in range(4)]
    X = [32, 48, 64, 80]; O = [96, 112]; Q = [128, 136]; KF = [144, 152]; VF = [160, 168]; IDX = 1
    AQ, AK, AV, WF, XF, SK, SV = 32, 48, 64, 80, 128, 240, 248
    for f in ld_step(0): f()
    if OPT["fine"] == 1: stamp(e, 3)
    e(f"""v_lshlrev_b32 v5, 4, v0             ; v5 = lane*16
v_mov_b32 v9, {hex(OOB)}
v_cmp_gt_u32 vcc, 56, v0
v_mov_b32 v31, 0
v_cndmask_b32 v9, v9, v5, vcc
s_lshl_b32 s55, s41, 8
s_lshl_b32 s56, s40, 3
s_add_u32 s55, s55, s56
s_add_u32 s55, s55, s42
s_mul_i32 s56, s55, 896
s_mov_b32 s53, {WS_E}
buffer_load_dword v104, v31, s[28:31], s53 offen sc1
buffer_load_dwordx4 v[96:99], v9, s[20:23], s56 offen
buffer_load_dwordx4 v[100:103], v9, s[32:35], 0 offen""")
    e.vmop("g", 3)
    if OPT["wqpf"]:
        assert OPT["map"] == 1
        e(f"""s_lshr_b32 s53, s2, 3
s_mul_i32 s53, s53, 56
s_mul_i32 s54, s42, 7
s_add_u32 s53, s53, s54
v_add_u32 v10, s53, v0
v_lshrrev_b32 v11, 2, v10
v_mul_u32_u24 v11, 2688, v11
v_and_b32 v10, 3, v10
v_lshl_add_u32 v10, v10, 7, v11
v_mov_b32 v11, {hex(OOB)}
v_cmp_gt_u32 vcc, 7, v0
s_and_b32 s53, s40, 8
v_cndmask_b32 v10, v11, v10, vcc
s_mul_i32 s53, s53, 48
buffer_load_dword v32, v10, s[24:27], s53 offen""")
        e.vmop("g", 1)
    e(f"""v_and_b32 v8, 31, v0               ; row
v_lshrrev_b32 v19, 5, v0            ; h
v_lshrrev_b32 v10, 1, v8
v_and_b32 v10, 7, v10               ; key
v_lshlrev_b32 v11, 7, v8
v_add_u32 v11, s48, v11""")
    for ee in range(4):
        e(f"""v_add_u32 v16, {2*ee}, v19
v_xor_b32 v16, v16, v10
v_lshl_add_u32 v{12+ee}, v16, 4, v11
v_add_u32 v{24+ee}, 65536, v{12+ee}""")
    e(f"""v_lshrrev_b32 v16, 2, v0
v_and_b32 v16, 3, v16               ; r
v_lshl_add_u32 v16, v19, 3, v16     ; 8h + r
v_lshlrev_b32 v16, 6, v16
v_lshrrev_b32 v17, 4, v0
v_and_b32 v17, 1, v17
v_lshl_add_u32 v16, v17, 5, v16
v_and_b32 v17, 3, v0
v_lshl_add_u32 v16, v17, 3, v16
v_cmp_eq_u32 vcc, 28, v8
v_mov_b32 v18, 0x3f803f80
v_mov_b32 v{SK+6}, 0
v_mov_b32 v{SK+7}, 0""")
    for r in range(8): e(f"v_cndmask_b32 v{SV+r}, v31, v18, vcc")
    e(f"""v_and_b32 v21, 0x33, v0
v_and_b32 v22, 4, v0
v_lshl_or_b32 v21, v22, 1, v21
v_and_b32 v22, 8, v0
v_lshrrev_b32 v22, 1, v22
v_or_b32 v21, v21, v22
v_lshlrev_b32 v21, 4, v21           ; swap23(lane)*16
s_lshr_b32 s58, s46, 5              ; tile
s_lshl_b32 s59, s40, 6
s_add_u32 s58, s58, s59
s_lshl_b32 s59, s58, 12
s_lshl_b32 s58, s42, 12
s_add_u32 s58, s58, {slot_base(0)}
v_add_u32 v23, s58, v21
v_add_u32 v22, s58, v5
s_mov_b32 s100, {hex(f2u(CSCALE))}
s_mov_b32 s101, s100
s_and_b32 s44, s42, 3               ; qp
s_lshr_b32 s45, s42, 2              ; kh
s_lshl_b32 s46, s40, 18
s_lshl_b32 s58, s45, 14
s_add_u32 s58, s58, 65536
v_add_u32 v28, s58, v5
v_add_u32 v29, 65536, v28           ; slot U4
s_lshl_b32 s58, s42, 11
s_add_u32 s58, s58, {QX}
v_add_u32 v6, s58, v5
s_lshl_b32 s58, s44, 12
s_add_u32 s58, s58, {QX}
v_add_u32 v7, s58, v5
v_lshlrev_b32 v8, 7, v0
v_mov_b32 v{IDX}, 0xdddddddd
v_lshrrev_b32 v10, 3, v0
v_mul_u32_u24 v11, 896, v10
v_and_b32 v17, 7, v0
v_and_b32 v10, 2, v10
v_lshlrev_b32 v10, 1, v10
v_xor_b32 v17, v17, v10
v_lshl_add_u32 v30, v17, 4, v11""")
    for r in range(105, 128): e(f"v_mov_b32 v{r}, 0")
    if OPT["bar0"]: e("s_barrier")
    for f in ld_step(1): f()
    if OPT["dist"] == 3:
        for f in ld_step(2): f()
    if OPT["fine"] == 1: stamp(e, 4)
    at = []
    def atom(t, vm=None, nvm=0, lds=0):
        w = sum(1 for l in t.strip().split("\n") if l.strip() and not l.strip().startswith("s_"))
        at.append((w, t, vm, nvm, lds))
    lg = []
    def ride(budget):
        while at and budget > 0:
            w, t, vm, nvm, l = at.pop(0)
            e(t); budget -= w
            if vm: e.vmop(vm, nvm)
            lg.extend(["w"] * l)
    atom("v_mov_b32 v20, 0")
    for i in range(4):
        for l in f"""v_lshlrev_b32 v18, 16, v{96+i}
v_lshlrev_b32 v19, 16, v{100+i}
v_fmac_f32 v20, v18, v19
v_and_b32 v18, 0xffff0000, v{96+i}
v_and_b32 v19, 0xffff0000, v{100+i}
v_fmac_f32 v20, v18, v19""".split("\n"): atom(l)
    for k, m in enumerate(("row_shr:1", "row_shr:2", "row_shr:4", "row_shr:8")):
        atom(f"v_mov_b32 v{96+2*k}, 0\nv_mov_b32 v{97+2*k}, 0\nv_add_f32_dpp v20, v20, v20 {m} row_mask:0xf bank_mask:0xf bound_ctrl:0")
    atom(f"""v_readfirstlane_b32 s67, v104
v_mov_b32 v104, 0
v_readlane_b32 s60, v20, 15
v_readlane_b32 s61, v20, 31
v_readlane_b32 s62, v20, 47
v_readlane_b32 s63, v20, 63""")
    atom(f"""s_mul_i32 s67, s67, 0x41c64e6d
s_add_u32 s67, s67, 0x3039
v_mov_b32 v20, s60
v_add_f32 v20, s61, v20
v_add_f32 v20, s62, v20
v_add_f32 v20, s63, v20""")
    atom(f"""v_mul_f32 v20, {hex(f2u(-math.log2(math.e)))}, v20
v_exp_f32 v20, v20
s_lshl_b32 s55, s55, 2
v_add_f32 v20, 1.0, v20
v_rcp_f32 v19, v20
s_add_u32 s55, s55, {WS_G}
v_mov_b32 v20, s67""")
    atom(f"""s_lshr_b32 s62, s2, 3
s_mul_i32 s61, s62, 0x2493
s_lshr_b32 s61, s61, 16
s_mul_i32 s63, s61, 7
s_sub_u32 s62, s62, s63
s_mul_i32 s63, s42, {8*896}
s_lshl_b32 s64, s62, 7
s_add_u32 s63, s63, s64""")
    def wread(ks):
        b = WF + (ks % 2) * 8
        for p in range(2):
            off = (ks // 4) * 8192 + p * 4096 + (ks % 4) * 1024
            e(f"ds_read_b64_tr_b16 {vr(b+4*p, 2)}, v16 offset:{off}\nds_read_b64_tr_b16 {vr(b+4*p+2, 2)}, v16 offset:{off+256}")
    DI = OPT["dist"]
    wq = [(lambda t: lambda: load_wq(t))(t) for t in range(4)]
    for i in range(7):
        pend = ld_step(i + DI) if i + DI < 7 else wq
        place = {0: [2, 1, 1, 1], 1: [5, 0, 0, 0], 2: [0, 0, 0, 5], 3: [0, 1, 2, 2]}[OPT["place"]]
        if pend is wq: place = {0: [0, 0, 0, 2], 1: [0, 0, 0, 4], 2: [1, 1, 1, 1], 3: [0, 1, 0, 1], 4: [1, 0, 0, 0], 5: [1, 0, 1, 0] if i == 5 else [1, 0, 0, 0], 6: [1, 0, 1, 0]}[OPT["wqpl"]]
        if OPT["fine"] == 1 and i == 0:
            e.vmwait(("W", i)); stamp(e, 5)
        e.vmwait(("X", i), ("W", i))
        if OPT["fine"] == 1 and i == 0: stamp(e, 6)
        xb = XF + i * 16
        for ee in range(4):
            e(f"ds_read_b128 {vr(xb+4*ee, 4)}, v{(24 if i % 3 == 2 else 12)+ee} offset:{(i%3%2)*32768}")
        e("s_barrier")
        if OPT["fine"]:
            if i == 0 and OPT["fine"] == 1: stamp(e, 7, True)
            if OPT["fine"] == 2: stamp(e, i + 1, True)
        elif i in (0, 3): stamp(e, 1 + i//3, True)
        wread(4*i)
        for ee in range(4):
            ks = 4*i + ee
            if ee < 3:
                wread(ks+1); e("s_waitcnt lgkmcnt(4)")
            else:
                e("s_waitcnt lgkmcnt(0)")
            b = WF + (ks % 2) * 8
            x = vr(xb+4*ee, 4)
            z = ks == 0
            e(f"v_mfma_f32_32x32x16_bf16 {vr(AV,16)}, {x}, {vr(b+4,4)}, {'0' if z else vr(AV,16)}")
            e(f"v_mfma_f32_32x32x16_bf16 {vr(AK,16)}, {vr(b,4)}, {x}, {'0' if z else vr(AK,16)}")
            for _ in range(place[ee]):
                if pend: pend.pop(0)()
            if i >= 1: ride(4)
        assert pend is wq or not pend
    assert not at
    if not OPT["fine"]: stamp(e, 3)
    e(f"""s_mov_b64 exec, 1
buffer_store_dword v19, v31, s[28:31], s55 offen sc1
s_mov_b64 exec, -1
s_nop 6""")
    e.vmop("kv", 1)
    for r in range(0, 8, 4):
        atom("s_mov_b32 exec_lo, 0x0fffffff\ns_mov_b32 exec_hi, 0x0fffffff\n" +
             "".join(f"v_cvt_pk_bf16_f32 v{SV+r+k}, v{AV+2*(r+k)}, v{AV+2*(r+k)+1}\n" for k in range(4)) + "s_mov_b64 exec, -1")
    def satom(i):
        if OPT["fine"] == 4 and STAMP: atom(f"s_memtime s[{68+4*i}:{69+4*i}]\ns_memrealtime s[{70+4*i}:{71+4*i}]")
    satom(2)
    atom(f"buffer_store_dwordx4 {vr(SV,4)}, v5, s[28:31], s59 offen offset:2048 sc1", "kv", 1)
    atom(f"buffer_store_dwordx4 {vr(SV+4,4)}, v5, s[28:31], s59 offen offset:3072 sc1", "kv", 1)
    satom(3)
    for r in range(8): atom(f"v_pk_mul_f32 {vr(AK+2*r,2)}, {vr(AK+2*r,2)}, s[100:101]")
    for r in range(6): atom(f"v_cvt_pk_bf16_f32 v{SK+r}, v{AK+2*r}, v{AK+2*r+1}")
    atom("s_mov_b32 exec_hi, 0\n" + "".join(f"v_cvt_pk_bf16_f32 v{SK+r}, v{AK+2*r}, v{AK+2*r+1}\n" for r in (6, 7)) + "s_mov_b64 exec, -1")
    satom(4)
    atom(f"buffer_store_dwordx4 {vr(SK,4)}, v21, s[28:31], s59 offen sc1", "kv", 1)
    atom(f"buffer_store_dwordx4 {vr(SK+4,4)}, v21, s[28:31], s59 offen offset:1024 sc1", "kv", 1)
    satom(5)
    while wq:
        n0 = len(e.L); v0 = len(e.vm); wq.pop(0)()
        atom("\n".join(e.L[n0:]), e.vm[-1], 1); del e.L[n0:]; del e.vm[v0:]
    atom(f"""s_lshl_b32 s47, s45, 14
s_lshl_b32 s48, s44, 10
s_add_u32 s47, s47, s48
s_add_u32 s49, s46, s47
s_cmp_lt_u32 s2, 224
s_cselect_b32 s22, {D*D*2}, 0
s_mov_b32 s20, s8
s_mov_b32 s21, s9
s_mov_b32 s24, s14
s_mov_b32 s25, s15
s_mov_b32 s26, s22""")
    for w in (f"ds_write_b128 v23, {vr(SK,4)}", f"ds_write_b128 v23, {vr(SK+4,4)} offset:1024",
              f"ds_write_b128 v22, {vr(SV,4)} offset:2048", f"ds_write_b128 v22, {vr(SV+4,4)} offset:3072"): atom(w, lds=1)
    def qread(ks):
        b = WF + (ks % 4) * 4
        e(f"ds_read_b64_tr_b16 {vr(b, 2)}, v16 offset:{ks*1024}\nds_read_b64_tr_b16 {vr(b+2, 2)}, v16 offset:{ks*1024+256}")
        lg.extend([ks, ks])
    def publish():
        e(f"""s_cmp_lg_u32 s42, 0
s_cbranch_scc1 L_nopub
s_lshl_b32 s53, s40, 3
s_add_u32 s53, s53, s41
s_lshl_b32 s53, s53, 7
s_add_u32 s53, s53, {WS_F1}
s_mov_b64 exec, 1
buffer_store_dword v20, v31, s[28:31], s53 offen sc1
s_mov_b64 exec, -1
L_nopub:""")
    G = OPT["qgrp"]
    if OPT["fine"] in (3, 4): stamp(e, 1)
    ride(OPT["ride0"])
    if OPT["fine"] == 4: stamp(e, 6, True)
    for t in range(0, 4, G):
        if OPT["fine"] == 3 and t == 2: stamp(e, 3)
        if t == OPT["pubt"]:
            assert not at
            e.vmwait(("Wq", t + G - 1), "kv")
        else: e.vmwait(("Wq", t + G - 1))
        if OPT["fine"] == 4 and t == 0: stamp(e, 7, True)
        e("s_barrier")
        if t == OPT["pubt"]:
            publish(); e.vm = [("Wq", 3)]
        if OPT["fine"] == 3: stamp(e, 2 + t, True)
        kss = list(range(8*t, min(8*(t+G), 28)))
        qread(kss[0]); qread(kss[1])
        for j, ks in enumerate(kss):
            if j + 2 < len(kss): qread(ks+2)
            e(f"s_waitcnt lgkmcnt({len(lg) - 1 - max(i for i, o in enumerate(lg) if o == ks)})")
            e(f"v_mfma_f32_32x32x16_bf16 {vr(AQ,16)}, {vr(WF+(ks%4)*4,4)}, {vr(XF+4*ks,4)}, {'0' if ks == 0 else vr(AQ,16)}")
            if ks < 27: ride(OPT["ride"])
    nrest = sum(a[0] for a in at)
    ride(1000)
    if nrest < 12: e(f"s_nop {11 - nrest}")
    if not OPT["fine"]: stamp(e, 4)
    for r in range(8): e(f"v_cvt_pk_bf16_f32 v{80+r}, v{AQ+2*r}, v{AQ+2*r+1}")
    e("s_mov_b32 exec_lo, 0\nv_mov_b32 v86, 0\nv_mov_b32 v87, 0\ns_mov_b64 exec, -1")
    e(f"ds_write_b128 v6, v[80:83]\nds_write_b128 v6, v[84:87] offset:1024")
    if OPT["fine"] == 3: stamp(e, 5)
    e("s_waitcnt vmcnt(0) lgkmcnt(0)" if OPT["pubt"] == 4 else "s_waitcnt lgkmcnt(0)")
    if OPT["fine"] == 3: stamp(e, 6)
    e("s_barrier")
    if OPT["fine"] == 3: stamp(e, 7, True)
    for i in range(4): e(f"ds_read_b128 {vr(Q[0]+4*i,4)}, v7 offset:{1024*i}")
    def dma1(c, u):
        if u == 0: e(f"s_add_u32 s50, s41, {c}\ns_and_b32 s50, s50, 7\ns_lshl_b32 s50, s50, 15\ns_add_u32 s50, s50, s49")
        e(f"""s_add_u32 m0, s47, {slot_base(c) + u*4096}
s_add_u32 s53, s50, {u*4096}
buffer_load_dwordx4 v5, s[28:31], s53 offen {"sc1 " if OPT["kvsc"] else ""}lds""")
        e.vmop(("KV", c, u))
    vq = []
    def dma(c): vq.extend([(lambda u: lambda: dma1(c, u))(u) for u in range(4)])
    def woq(*a): vq.append(lambda: wo(*a))
    def drip(k=1):
        for _ in range(k):
            if vq: vq.pop(0)()
    def wo(t, touch=None):
        r = "s[20:23]" if t < 7 else "s[24:27]"
        if touch is None:
            e(f"s_add_u32 m0, s51, {t*8192}\ns_add_u32 s53, s63, {(t%7)*64*896}\nbuffer_load_dwordx4 v30, {r}, s53 offen lds")
        else:
            e(f"s_add_u32 s53, s63, {(t%7)*64*896}\nbuffer_load_dwordx4 {vr(touch,4)}, v30, {r}, s53 offen")
        e.vmop("wo")
    def lds(t):
        c, u = t // 4, t % 4
        sb = slot_base(c)
        return ("v29", u*4096) if sb == 131072 else ("v28", sb - 65536 + u * 4096)
    def rdK(t):
        a, o = lds(t)
        e(f"ds_read_b128 {vr(KF[t%2],4)}, {a} offset:{o}\nds_read_b128 {vr(KF[t%2]+4,4)}, {a} offset:{o+1024}")
    def rdV(t):
        a, o = lds(t)
        e(f"ds_read_b128 {vr(VF[t%2],4)}, {a} offset:{o+2048}\nds_read_b128 {vr(VF[t%2]+4,4)}, {a} offset:{o+3072}")
    def Smm(n, i):
        t, a = n // 2, n % 2
        d = vr(X[n%4], 16)
        e(f"v_mfma_f32_32x32x16_bf16 {d}, {vr(KF[t%2]+4*i,4)}, {vr(Q[a]+4*i,4)}, {'0' if i == 0 else d}")
    def PV(n, i):
        t, a = n // 2, n % 2
        e(f"v_smfmac_f32_32x32x32_bf16 {vr(O[a],16)}, {vr(VF[t%2]+4*i,4)}, {vr(X[n%4]+8*i,8)}, v{IDX}")
    def ex(n, r0):
        for r in range(r0, r0+4): e(f"v_exp_f32 v{X[n%4]+r}, v{X[n%4]+r}")
    rdK(0)
    if OPT["pubt"] == 4: publish()
    e("s_waitcnt lgkmcnt(0)")
    Smm(0, 0); Smm(0, 1)
    e("s_nop 15")
    NT = 32
    for n in range(2*NT):
        t, a = n // 2, n % 2
        if a == 0:
            if t == OPT["pollt"]:
                e(f"s_lshl_b32 s53, s40, 10\ns_add_u32 s53, s53, {WS_F1}")
                poll(e, "L_poll1", "v8", "s53", 8)
                if not OPT["fine"]: stamp(e, 5)
                dma(1); drip(4); dma(2)
            if t % 4 == 3 and t + 1 < NT and not (OPT["diag"] & 2 and t > 4):
                c1 = (t + 1) // 4
                assert c1 == 1 or not vq
                e.vmwait(("KV", c1, 3))
                e("s_barrier")
                if c1 == 1 and not OPT["fine"]: stamp(e, 6)
                if 2 <= c1 < 7: dma(c1 + 1)
                if c1 <= 4: woq(2*c1 - 2); woq(2*c1 - 1)
                if c1 in (5, 6):
                    for k in range(3): woq(8 + 3*(c1-5) + k, 180 + 4*k)
                if c1 == 7:
                    for k in range(8, 12): woq(k)
                if OPT["drip"] == 0: drip(100)
                if OPT["prio"] == 1: e("s_setprio 0\ns_cmp_lt_u32 s42, 4\ns_cbranch_scc1 1\ns_setprio 1")
            if OPT["prio"] == 1 and t % 4 == 1 and t > 4: e("s_setprio 0")
            if OPT["prio"] == 2 and t > 2: e(f"s_setprio 0\ns_cmp_{'lt' if t % 2 else 'ge'}_u32 s42, 4\ns_cbranch_scc1 1\ns_setprio 1")
            if t == 20:
                e(f"""s_lshl_b32 s54, s42, 12
s_add_u32 s54, s54, 131072
v_add_u32 v6, s54, v5
s_xor_b32 s54, s54, 16384
v_add_u32 v7, s54, v5
s_lshl_b32 s52, s41, 3
s_lshl_b32 s53, s44, 1
s_add_u32 s52, s52, s53
s_add_u32 s52, s52, s45
s_lshl_b32 s52, s52, 5
s_add_u32 s52, s52, s40
s_lshl_b32 s55, s52, 11
s_add_u32 s55, s55, {WS_O}
s_lshl_b32 s52, s52, 7
s_add_u32 s52, s52, {WS_F2}
s_mov_b32 s56, {hex(f2u(2.0**-16))}
s_mov_b32 s57, {hex(f2u(2.0**64))}
s_mov_b32 s58, {hex(f2u(2.0**126))}
v_mov_b32 v{SK+6}, 0
v_mov_b32 v{SK+7}, 0""")
            if OPT["diag"] & 1 and t > 4: pass
            else:
                if t + 1 < NT: rdK(t+1)
                rdV(t)
        else:
            e("s_waitcnt lgkmcnt(0)")
        if n + 1 < 2*NT: Smm(n+1, 0)
        ex(n, 0)
        if n + 1 < 2*NT: Smm(n+1, 1)
        ex(n, 4)
        if OPT["drip"] >= 1: drip()
        if n > 0: PV(n-1, 0)
        ex(n, 8)
        if n > 0: PV(n-1, 1)
        ex(n, 12)
        if OPT["drip"] >= 2: drip()
    assert not vq
    e("s_setprio 0\ns_nop 0")
    PV(2*NT-1, 0); PV(2*NT-1, 1)
    if not OPT["fine"]: stamp(e, 7)
    stamp_flush(e, 0, 8); stamp(e, 0)
    A = X[0]
    e(f"""s_barrier
s_nop 9
s_cmp_eq_u32 s45, 0
s_cbranch_scc1 L_k0""")
    for k, lab in ((1, ""), (0, "L_k0:")):
        if lab: e(lab)
        for i in range(4): e(f"ds_write_b128 v6, {vr(O[1-k]+4*i,4)} offset:{1024*i}")
        e("s_waitcnt lgkmcnt(0)\ns_barrier")
        for i in range(4): e(f"ds_read_b128 {vr(X[1]+4*i,4)}, v7 offset:{1024*i}")
        for i in (3, 0, 1, 2):
            pass
        for i in range(4):
            e(f"s_waitcnt lgkmcnt({3-i})")
            for r in range(4*i, 4*i+4, 2): e(f"v_pk_add_f32 {vr(A+r,2)}, {vr(O[k]+r,2)}, {vr(X[1]+r,2)}")
        if k == 1: e("s_branch L_k1")
    e("L_k1:")
    e(f"""v_mov_b32 v10, v{A+12}
v_mov_b32 v9, v{A+12}
v_add_f32 v11, abs(v{A}), abs(v{A+1})
v_add_f32 v12, abs(v{A+2}), abs(v{A+3})
v_permlane32_swap_b32 v10, v9""")
    for r in range(4, 16, 2): e(f"v_add_f32 v11, abs(v{A+r}), v11\nv_add_f32 v12, abs(v{A+r+1}), v12")
    e(f"""v_cmp_le_f32 s[64:65], s56, v9
v_add_f32 v11, v11, v12
v_cmp_ge_f32 vcc, s57, v9
s_and_b64 s[64:65], s[64:65], vcc
v_cmp_ge_f32 vcc, s58, v11
s_and_b64 s[64:65], s[64:65], vcc
s_cmp_eq_u64 s[64:65], exec
s_cbranch_scc0 L_fallback
L_fin:
v_rcp_f32 v10, v9
s_nop 0""")
    for r in range(0, 16, 2): e(f"v_pk_mul_f32 {vr(A+r,2)}, {vr(A+r,2)}, v[10:11] op_sel_hi:[1,0]")
    for r in range(4): e(f"v_cvt_pk_bf16_f32 v{SK+r}, v{A+2*r}, v{A+2*r+1}")
    e(f"buffer_store_dwordx4 {vr(SK,4)}, v5, s[28:31], s55 offen sc1")
    for r in range(4, 8):
        if r == 6: e("s_mov_b32 exec_hi, 0")
        e(f"v_cvt_pk_bf16_f32 v{SK+r}, v{A+2*r}, v{A+2*r+1}")
    e(f"s_mov_b64 exec, -1\nbuffer_store_dwordx4 {vr(SK+4,4)}, v5, s[28:31], s55 offen offset:1024 sc1")
    e.vmop("o", 2)
    wo(12); wo(13)
    stamp(e, 1)
    OF = 64
    srd(e, 32, 18, S*D*2)
    e(f"""s_and_b32 s44, s42, 1               ; ri
s_lshr_b32 s45, s42, 1              ; kq
s_and_b32 s46, s2, 7
s_lshl_b32 s46, s46, 3
s_lshl_b32 s47, s61, 1
s_add_u32 s46, s46, s47
s_add_u32 s46, s46, s44
s_lshl_b32 s47, s46, 2
s_add_u32 s47, s47, s45
s_lshl_b32 s48, s47, 10
s_add_u32 s48, s48, {WS_F2}
s_lshl_b32 s47, s47, 14
s_add_u32 s47, s47, {WS_O}
v_and_b32 v6, 31, v0
v_lshlrev_b32 v7, 2, v6
v_lshrrev_b32 v18, 5, v0            ; h
v_lshrrev_b32 v9, 2, v0
v_and_b32 v9, 3, v9                 ; r
v_lshlrev_b32 v12, 7, v9
v_lshrrev_b32 v9, 1, v9
v_lshl_add_u32 v12, v9, 6, v12
v_lshrrev_b32 v9, 4, v0
v_and_b32 v9, 1, v9
v_lshl_add_u32 v12, v9, 5, v12
v_and_b32 v9, 3, v0
v_lshl_add_u32 v12, v9, 3, v12
s_mul_i32 s54, s45, 28672
v_add_u32 v12, s54, v12
v_xor_b32 v13, 64, v12
v_lshl_add_u32 v10, v18, 9, v12
v_xor_b32 v11, 64, v10""")
    e.vmwait("o")
    e(f"""s_mov_b64 exec, 1
buffer_store_dword v20, v31, s[28:31], s52 offen sc1
s_mov_b64 exec, -1
s_cmp_ge_u32 s2, 224
s_cbranch_scc1 L_end""")
    stamp(e, 2)
    poll(e, "L_poll2", "v8", "s48", 8)
    stamp(e, 3)
    for u in range(16):
        if u % 4 == 0: e(f"s_add_u32 s53, s47, {(u//4)*4096}")
        e(f"buffer_load_dwordx4 {vr(OF+4*u,4)}, v5, s[28:31], s53 offen offset:{(u%4)*1024} sc1")
        e.vmop(("of", u))
    e("s_barrier")
    e(f"""s_lshl_b32 s53, s46, 7
s_add_u32 s53, s53, {WS_G}
buffer_load_dword v19, v7, s[28:31], s53 offen sc1""")
    e.vmop("g")
    AC = [32, 48]; WF = 128
    def wread3(f):
        b = WF + (f % 2) * 8
        k0 = 28 * (f // 2) + 16 * (f % 2)
        for ci in range(2):
            e(f"ds_read_b64_tr_b16 {vr(b+4*ci,2)}, v{10+ci} offset:{k0*128}\nds_read_b64_tr_b16 {vr(b+4*ci+2,2)}, v{(12 if f % 2 else 10)+ci} offset:{(k0+8)*128}")
    wread3(0)
    for f in range(16):
        if f < 15:
            wread3(f+1); e("s_waitcnt lgkmcnt(4)")
        else: e("s_waitcnt lgkmcnt(0)")
        e.vmwait(("of", f))
        b = WF + (f % 2) * 8
        for ci in range(2):
            e(f"v_mfma_f32_32x32x16_bf16 {vr(AC[ci],16)}, {vr(b+4*ci,4)}, {vr(OF+4*f,4)}, {'0' if f == 0 else vr(AC[ci],16)}")
    stamp(e, 4)
    RB = 114688
    e(f"""s_waitcnt vmcnt(0)
v_sub_f32 v13, 1.0, v19
s_cmp_ge_u32 s42, 4
s_cselect_b64 vcc, -1, 0
s_mul_i32 s54, s44, 24576
s_add_u32 s54, s54, {RB}
v_add_u32 v14, s54, v5
s_mul_i32 s55, s45, 6144
v_cndmask_b32 v12, v19, v13, vcc
v_add_u32 v16, s55, v14
v_mul_u32_u24 v15, 896, v6
v_lshl_add_u32 v15, v18, 4, v15
s_mul_i32 s54, s46, {32*896}
s_lshl_b32 s55, s62, 7
s_add_u32 s54, s54, s55
s_lshl_b32 s55, s45, 5
s_add_u32 s54, s54, s55
s_cmp_eq_u32 s45, 1
s_cbranch_scc1 L_r1
s_cmp_eq_u32 s45, 2
s_cbranch_scc1 L_r2
s_cmp_eq_u32 s45, 3
s_cbranch_scc1 L_r3""")
    for kq in range(4):
        e(f"L_r{kq}:")
        for pi in [p for p in range(4) if p != kq] + [kq]:
            for r in range(0, 8, 2):
                e(f"v_pk_mul_f32 {vr((64 if pi == kq else 32+8*pi)+r,2)}, {vr(32+8*pi+r,2)}, v[12:13] op_sel_hi:[1,0]")
            if pi != kq:
                o = pi*6144 + ((kq - pi - 1) % 4)*2048
                e(f"ds_write_b128 v14, {vr(32+8*pi,4)} offset:{o}\nds_write_b128 v14, {vr(36+8*pi,4)} offset:{o+1024}")
        if kq < 3: e("s_branch L_rd")
    e("L_rd:\ns_waitcnt lgkmcnt(0)\ns_barrier")
    for q in range(3):
        e(f"ds_read_b128 {vr(72+8*q,4)}, v16 offset:{q*2048}\nds_read_b128 {vr(76+8*q,4)}, v16 offset:{q*2048+1024}")
    for q in range(3):
        e(f"s_waitcnt lgkmcnt({4-2*q})")
        for r in range(0, 8, 2): e(f"v_pk_add_f32 {vr(64+r,2)}, {vr(64+r,2)}, {vr(72+8*q+r,2)}")
    for r in range(4): e(f"v_cvt_pk_bf16_f32 v{96+r}, v{64+2*r}, v{64+2*r+1}")
    e(f"""s_nop 1
v_permlane32_swap_b32 v96, v98
v_permlane32_swap_b32 v97, v99
buffer_store_dwordx4 v[96:99], v15, s[32:35], s54 offen{["", " sc1", " nt", " sc0 sc1"][OPT["outsc"]]}""")
    stamp(e, 5)
    if STAMP: e("s_waitcnt vmcnt(0)")
    stamp(e, 6); stamp_flush(e, 1, 7)
    e(f"""s_or_b32 s53, s2, s42
s_cmp_lg_u32 s53, 0
s_cbranch_scc1 L_end
s_mov_b32 s53, {WS_E}
s_mov_b64 exec, 1
buffer_store_dword v20, v31, s[28:31], s53 offen sc1
L_end:
s_endpgm""")
    Sx, M = X[1], X[2]
    e("L_fallback:\ns_cmp_eq_u32 s45, 0\ns_cbranch_scc1 L_fb0")
    for r in range(8): e(f"v_mov_b32 v{Q[0]+r}, v{Q[1]+r}")
    e(f"""L_fb0:
v_mov_b32 v10, 0xff800000
s_mov_b32 s56, s46
s_add_u32 s57, s46, 262144
L_fb1:
buffer_load_dwordx4 {vr(KF[0],4)}, v5, s[28:31], s56 offen sc1
buffer_load_dwordx4 {vr(KF[0]+4,4)}, v5, s[28:31], s56 offen offset:1024 sc1
s_waitcnt vmcnt(0)
v_mfma_f32_32x32x16_bf16 {vr(Sx,16)}, {vr(KF[0],4)}, {vr(Q[0],4)}, 0
v_mfma_f32_32x32x16_bf16 {vr(Sx,16)}, {vr(KF[0]+4,4)}, {vr(Q[0]+4,4)}, {vr(Sx,16)}
s_nop 15""")
    for r in range(0, 16, 2): e(f"v_max3_f32 v10, v{Sx+r}, v{Sx+r+1}, v10")
    e(f"""s_add_u32 s56, s56, 4096
s_cmp_lt_u32 s56, s57
s_cbranch_scc1 L_fb1
v_mov_b32 v11, v10
s_nop 1
v_permlane32_swap_b32 v10, v11
s_nop 1
v_max_f32 v10, v10, v11""")
    for r in range(16): e(f"v_sub_f32 v{M+r}, 0, v10\nv_mov_b32 v{A+r}, 0")
    e(f"""s_mov_b32 s56, s46
L_fb2:
buffer_load_dwordx4 {vr(KF[0],4)}, v5, s[28:31], s56 offen sc1
buffer_load_dwordx4 {vr(KF[0]+4,4)}, v5, s[28:31], s56 offen offset:1024 sc1
buffer_load_dwordx4 {vr(VF[0],4)}, v5, s[28:31], s56 offen offset:2048 sc1
buffer_load_dwordx4 {vr(VF[0]+4,4)}, v5, s[28:31], s56 offen offset:3072 sc1
s_waitcnt vmcnt(0)
v_mfma_f32_32x32x16_bf16 {vr(Sx,16)}, {vr(KF[0],4)}, {vr(Q[0],4)}, {vr(M,16)}
v_mfma_f32_32x32x16_bf16 {vr(Sx,16)}, {vr(KF[0]+4,4)}, {vr(Q[0]+4,4)}, {vr(Sx,16)}
s_nop 15""")
    for r in range(16): e(f"v_exp_f32 v{Sx+r}, v{Sx+r}")
    e(f"""s_nop 1
v_smfmac_f32_32x32x32_bf16 {vr(A,16)}, {vr(VF[0],4)}, {vr(Sx,8)}, v{IDX}
v_smfmac_f32_32x32x32_bf16 {vr(A,16)}, {vr(VF[0]+4,4)}, {vr(Sx+8,8)}, v{IDX}
s_add_u32 s56, s56, 4096
s_cmp_lt_u32 s56, s57
s_cbranch_scc1 L_fb2
s_nop 15
v_mov_b32 v10, v{A+12}
v_mov_b32 v9, v{A+12}
s_nop 1
v_permlane32_swap_b32 v10, v9
s_nop 1
s_branch L_fin""")

def main(out):
    e = E()
    hdr = open("cdna_kernels/" + NAME + ".s.ref").read().split("; Override launch")[0]
    e.L.append(hdr.rstrip("\n"))
    e.L.append(f"; @launch grid=(256,1,1) block=(512,1,1) lds={LDS}")
    e('.amdgcn_target "amdgcn-amd-amdhsa--gfx950"\n.text')
    kn = NAME + "_kernel"
    kernel(e, kn)
    t = e.text() + f""".section .rodata,"a"
.p2align 6
.amdhsa_kernel {kn}
  .amdhsa_next_free_vgpr 256
  .amdhsa_next_free_sgpr 102
  .amdhsa_accum_offset 256
  .amdhsa_group_segment_fixed_size 0
  .amdhsa_kernarg_size 80
  .amdhsa_user_sgpr_count 2
  .amdhsa_user_sgpr_kernarg_segment_ptr 1
  .amdhsa_system_sgpr_workgroup_id_x 1
  .amdhsa_float_denorm_mode_32 3
.end_amdhsa_kernel
"""
    open(out, "w").write(t)
if __name__ == "__main__":
    args = sys.argv[1:]
    if "--stamp" in args: STAMP = True; args.remove("--stamp")
    for a in list(args):
        if "=" in a:
            k, v = a.split("="); OPT[k] = int(v); args.remove(a)
    main(args[0] if args else "cdna_kernels/" + NAME + ".s")
```

```python
import sys, math, struct
NAME = "gated_mix__mha_block__mha_block__prompt"
S, D, H, DH = 2048, 448, 16, 28
WS_KV, WS_O, WS_G, WS_F1, WS_F2, WS_E = 0, 8 << 20, (12 << 20) + (320 << 10), (12 << 20) + (256 << 10), 12 << 20, (12 << 20) + (384 << 10)
WS_SIZE = 268435456
CSCALE = math.log2(math.e) / math.sqrt(DH)
OOB = 0x7ff00000
SPIN = 1 << 17
OPT = dict(rot=1, pollt=1, drip=1, prio=1, diag=0, wqpf=0, map=1, wqpl=5, bar0=1, dist=2, place=0, qgrp=2, ride0=100, ride=8, nopq=4, wqe=1, pubt=2, kvsc=1, touch=0, padp=-1, fine=0, outsc=0, padt=0, dbg=-1)
def f2u(x): return struct.unpack("<I", struct.pack("<f", x))[0]

class E:
    def __init__(s): s.L = []; s.vm = []
    def __call__(s, t):
        for l in t.strip("\n").split("\n"):
            if not l.strip(): continue
            s.L.append(l if l.rstrip().endswith(":") or l.startswith(".") else "    " + l.strip())
    def vmop(s, tag, n=1): s.vm += [tag] * n
    def vmwait(s, *tags):
        need = max(i for i, o in enumerate(s.vm) if o in tags)
        n = len(s.vm) - 1 - need
        assert n < 64
        s(f"s_waitcnt vmcnt({n})")
    def text(s): return "\n".join(s.L) + "\n"

STAMP = False
NST = [0]
def stamp(e, i, wait=False):
    k = NST[0]; NST[0] += 1
    if OPT["padp"] >= 0:
        if k == 0: e("s_memrealtime s[68:69]")
        if k == OPT["padp"]:
            e(f"""L_pad:
s_memrealtime s[70:71]
s_waitcnt lgkmcnt(0)
s_sub_u32 s70, s70, s68
s_cmp_lt_u32 s70, {OPT["padt"]}
s_cbranch_scc1 L_pad""")
    if not STAMP: return
    e(f"s_memtime s[{68+4*i}:{69+4*i}]\ns_memrealtime s[{70+4*i}:{71+4*i}]")
    if wait: e("s_waitcnt lgkmcnt(0)")
def stamp_flush(e, kk, n):
    if not STAMP: return
    if OPT["dbg"] >= 0:
        e(f"""s_waitcnt lgkmcnt(0)
{"s_mov_b32 s38, s70" if kk == 0 else ""}
s_lshl_b32 s66, s2, 3
s_add_u32 s66, s66, s42
s_cmp_lg_u32 s66, {OPT["dbg"]*8}
s_cbranch_scc1 L_dbg{kk}
s_load_dwordx2 s[100:101], s[0:1], 64
v_mov_b32 v250, 0
s_mov_b64 exec, 1
s_waitcnt lgkmcnt(0)""")
        for i in range(n):
            e(f"s_sub_u32 s66, s{70+4*i}, s38\nv_mov_b32 v252, s66\nglobal_store_dword v250, v252, s[100:101] offset:{32*kk+4*i}\ns_nop 1")
        e(f"s_waitcnt vmcnt(0)\ns_mov_b64 exec, -1\nL_dbg{kk}:")
        return
    e(f"""s_waitcnt lgkmcnt(0)
s_lshl_b32 s66, s2, 3
s_add_u32 s66, s66, s42
s_lshl_b32 s66, s66, 6
s_add_u32 s66, s66, {(32<<20) + kk*256*8*64}
v_mov_b32 v250, 0
s_mov_b64 exec, 1""")
    for i in range(n):
        e(f"v_mov_b32 v252, s{68+4*i}\nv_mov_b32 v253, s{70+4*i}\nbuffer_store_dwordx2 v[252:253], v250, s[28:31], s66 offen offset:{8*i}\ns_nop 1")
        e.vmop("st")
    e("s_mov_b64 exec, -1")
def vr(a, n): return f"v[{a}:{a+n-1}]"
def srd(e, d, b, size):
    e(f"s_mov_b32 s{d}, s{b}\ns_mov_b32 s{d+1}, s{b+1}\ns_mov_b32 s{d+2}, {size}\ns_mov_b32 s{d+3}, 0x00020000")

LDS = 163840
XB = 57344
QX = 32768
def slot_base(i): return (4 - (7 - i) % 3) * 32768

def poll(e, label, vaddr, soff, nl):
    e(f"""s_mov_b32 s60, {SPIN}
s_mov_b64 exec, {hex((1 << nl) - 1)}
{label}:
buffer_load_dword v9, {vaddr}, s[28:31], {soff} offen sc1
s_sub_u32 s60, s60, 1
s_cbranch_scc1 {label}_x
s_waitcnt vmcnt(0)
v_cmp_ne_u32 vcc, s67, v9
s_cbranch_vccnz {label}
{label}_x:
s_mov_b64 exec, -1""")
    e.vm = []

def kernel(e, name):
    e(f".globl {name}\n.p2align 8\n.type {name},@function\n{name}:")
    e(f"s_cmp_ge_u32 s2, 256\ns_cbranch_scc1 L_end")
    stamp(e, 0)
    e("s_load_dwordx16 s[4:19], s[0:1], 0\ns_load_dwordx2 s[36:37], s[0:1], 72")
    if OPT["map"] == 0:
        e("""s_and_b32 s40, s2, 7
s_lshl_b32 s40, s40, 2
s_lshr_b32 s41, s2, 3
s_and_b32 s43, s41, 3
s_add_u32 s40, s40, s43             ; hh
s_lshr_b32 s41, s41, 2              ; b
s_lshl_b32 s52, s43, 1
s_add_u32 s52, s52, s41""")
    elif OPT["map"] == 1:
        e("""s_and_b32 s40, s2, 3
s_lshl_b32 s40, s40, 3
s_lshr_b32 s41, s2, 3
s_and_b32 s43, s41, 7
s_add_u32 s40, s40, s43             ; hh
s_lshr_b32 s41, s41, 3
s_lshl_b32 s52, s41, 1
s_add_u32 s52, s52, s43
s_and_b32 s43, s2, 4
s_add_u32 s41, s41, s43             ; b""")
    else:
        e("""s_and_b32 s40, s2, 1
s_lshl_b32 s40, s40, 4
s_lshr_b32 s41, s2, 3
s_and_b32 s43, s41, 15
s_add_u32 s40, s40, s43             ; hh
s_lshr_b32 s41, s41, 4
s_mul_i32 s52, s41, 3
s_and_b32 s43, s43, 7
s_add_u32 s52, s52, s43
s_and_b32 s43, s2, 6
s_add_u32 s41, s41, s43             ; b""")
    e("""v_lshrrev_b32 v1, 6, v0
v_and_b32 v0, 63, v0
v_readfirstlane_b32 s42, v1         ; wave""")
    e(f"""s_and_b32 s44, s40, 15            ; head
s_mul_i32 s45, s44, 56
v_lshrrev_b32 v2, 2, v0
v_mul_u32_u24 v2, 2688, v2
v_and_b32 v3, 3, v0
v_lshl_add_u32 v2, v3, 4, v2
v_add_u32 v2, s45, v2               ; v2 = W voffset
v_lshrrev_b32 v3, 3, v0
v_mul_u32_u24 v4, 896, v3
v_lshrrev_b32 v5, 4, v0
v_and_b32 v6, 7, v0
v_xor_b32 v7, v6, v5
v_lshl_add_u32 v3, v7, 4, v4
v_xor_b32 v7, 4, v7
v_lshl_add_u32 v4, v7, 4, v4
s_lshl_b32 s46, s41, 8
s_lshl_b32 s47, s42, 5
s_add_u32 s46, s46, s47
s_mul_i32 s47, s46, 896
s_lshl_b32 s48, s42, 12
s_add_u32 s48, s48, {XB}
s_and_b32 s49, s42, 3               ; e
s_mul_i32 s49, s49, {16*2688}
s_lshr_b32 s50, s42, 2              ; part (0=k,1=v)
s_mul_i32 s50, s50, 896
s_add_u32 s50, s50, s49
s_add_u32 s50, s50, 896
s_lshl_b32 s51, s42, 10             ; wave*1024""")
    if OPT["rot"]:
        e("""s_cmp_ge_u32 s52, 7
s_cselect_b32 s53, 7, 0
s_sub_u32 s52, s52, s53""")
    else:
        e("s_mov_b32 s52, 0")
    e("s_mov_b32 s39, s52                  ; c0")
    if OPT["fine"] == 1: stamp(e, 1)
    e("s_waitcnt lgkmcnt(0)")
    if OPT["fine"] == 1: stamp(e, 2)
    e("""s_cmp_ge_u32 s40, 16
s_cselect_b32 s6, s12, s6
s_cselect_b32 s7, s13, s7""")
    srd(e, 20, 4, S*D*2)
    srd(e, 24, 6, D*3*D*2)
    srd(e, 28, 36, WS_SIZE)
    srd(e, 32, 16, D*2)
    def load_wq(t):
        e(f"""s_lshr_b32 s53, s42, 2
s_add_u32 s53, s53, s39
s_add_u32 s53, s53, {2*t}
s_cmp_ge_u32 s53, 7
s_cselect_b32 s54, 7, 0
s_sub_u32 s53, s53, s54
s_mul_i32 s53, s53, {64*2688}
s_add_u32 s53, s53, s49""")
        if t == 3: e(f"s_cmp_ge_u32 s42, 4\ns_cselect_b32 s53, {hex(OOB)}, s53")
        e(f"s_add_u32 m0, s51, {t*8192}\ns_nop 0\nbuffer_load_dwordx4 v2, s[24:27], s53 offen lds")
        e.vmop(("Wq", t))
    def ld_step(i):
        def w():
            e(f"""s_add_u32 m0, s51, {i*8192}
s_mul_i32 s53, s52, {64*2688}
s_add_u32 s53, s53, s50
buffer_load_dwordx4 v2, s[24:27], s53 offen lds
s_lshl_b32 s54, s52, 7
s_add_u32 s54, s54, s47
s_add_u32 s52, s52, 1
s_cmp_eq_u32 s52, 7
s_cselect_b32 s52, 0, s52""")
            e.vmop(("W", i))
        def x(u):
            def f():
                e(f"""s_add_u32 m0, s48, {(i%3)*32768 + u*1024}
s_add_u32 s53, s54, {u*8*896}
buffer_load_dwordx4 v{3 + (u%2)}, s[20:23], s53 offen lds""")
                e.vmop(("X", i))
            return f
        return [w] + [x(u) for u in range(4)]
    X = [32, 48, 64, 80]; O = [96, 112]; Q = [128, 136]; KF = [144, 152]; VF = [160, 168]; IDX = 1
    AQ, AK, AV, WF, XF, SK, SV = 32, 48, 64, 80, 128, 240, 248
    for f in ld_step(0): f()
    if OPT["fine"] == 1: stamp(e, 3)
    e(f"""v_lshlrev_b32 v5, 4, v0             ; v5 = lane*16
v_mov_b32 v9, {hex(OOB)}
v_cmp_gt_u32 vcc, 56, v0
v_mov_b32 v31, 0
v_cndmask_b32 v9, v9, v5, vcc
s_lshl_b32 s55, s41, 8
s_lshl_b32 s56, s40, 3
s_add_u32 s55, s55, s56
s_add_u32 s55, s55, s42
s_mul_i32 s56, s55, 896
s_mov_b32 s53, {WS_E}
buffer_load_dword v104, v31, s[28:31], s53 offen sc1
buffer_load_dwordx4 v[96:99], v9, s[20:23], s56 offen
buffer_load_dwordx4 v[100:103], v9, s[32:35], 0 offen""")
    e.vmop("g", 3)
    if OPT["wqpf"]:
        assert OPT["map"] == 1
        e(f"""s_lshr_b32 s53, s2, 3
s_mul_i32 s53, s53, 56
s_mul_i32 s54, s42, 7
s_add_u32 s53, s53, s54
v_add_u32 v10, s53, v0
v_lshrrev_b32 v11, 2, v10
v_mul_u32_u24 v11, 2688, v11
v_and_b32 v10, 3, v10
v_lshl_add_u32 v10, v10, 7, v11
v_mov_b32 v11, {hex(OOB)}
v_cmp_gt_u32 vcc, 7, v0
s_and_b32 s53, s40, 8
v_cndmask_b32 v10, v11, v10, vcc
s_mul_i32 s53, s53, 48
buffer_load_dword v32, v10, s[24:27], s53 offen""")
        e.vmop("g", 1)
    e(f"""v_and_b32 v8, 31, v0               ; row
v_lshrrev_b32 v19, 5, v0            ; h
v_lshrrev_b32 v10, 1, v8
v_and_b32 v10, 7, v10               ; key
v_lshlrev_b32 v11, 7, v8
v_add_u32 v11, s48, v11""")
    for ee in range(4):
        e(f"""v_add_u32 v16, {2*ee}, v19
v_xor_b32 v16, v16, v10
v_lshl_add_u32 v{12+ee}, v16, 4, v11
v_add_u32 v{24+ee}, 65536, v{12+ee}""")
    e(f"""v_lshrrev_b32 v16, 2, v0
v_and_b32 v16, 3, v16               ; r
v_lshl_add_u32 v16, v19, 3, v16     ; 8h + r
v_lshlrev_b32 v16, 6, v16
v_lshrrev_b32 v17, 4, v0
v_and_b32 v17, 1, v17
v_lshl_add_u32 v16, v17, 5, v16
v_and_b32 v17, 3, v0
v_lshl_add_u32 v16, v17, 3, v16
v_and_b32 v17, 30, v8
v_cmp_eq_u32 vcc, 28, v17
v_mov_b32 v18, 0x3f803f80
v_mov_b32 v{SK+6}, 0
v_mov_b32 v{SK+7}, 0""")
    for r in range(8): e(f"v_cndmask_b32 v{SV+r}, v31, v18, vcc")
    e(f"""v_and_b32 v21, 0x33, v0
v_and_b32 v22, 4, v0
v_lshl_or_b32 v21, v22, 1, v21
v_and_b32 v22, 8, v0
v_lshrrev_b32 v22, 1, v22
v_or_b32 v21, v21, v22
v_lshlrev_b32 v21, 4, v21           ; swap23(lane)*16
s_lshr_b32 s58, s46, 5              ; tile
s_lshl_b32 s59, s40, 6
s_add_u32 s58, s58, s59
s_lshl_b32 s59, s58, 12
s_lshl_b32 s58, s42, 12
s_add_u32 s58, s58, {slot_base(0)}
v_add_u32 v23, s58, v21
v_cmp_le_u32 vcc, 11, v8
v_addc_co_u32 v9, vcc, 0, v8, vcc
v_cmp_le_u32 vcc, 14, v8
v_addc_co_u32 v9, vcc, 0, v9, vcc
v_cmp_le_u32 vcc, 25, v8
v_addc_co_u32 v9, vcc, 0, v9, vcc
v_and_b32 v10, 1, v8
v_lshl_add_u32 v10, v10, 2, 11
v_and_b32 v11, 2, v8
v_lshl_add_u32 v10, v11, 3, v10     ; 28..31 -> 11, 15, 27, 31
v_cmp_le_u32 vcc, 28, v8
v_cndmask_b32 v9, v9, v10, vcc
v_lshl_add_u32 v9, v19, 5, v9
v_lshlrev_b32 v9, 4, v9
v_add_u32 v22, s58, v9
s_mov_b32 s100, {hex(f2u(CSCALE))}
s_mov_b32 s101, s100
s_and_b32 s44, s42, 3               ; qp
s_lshr_b32 s45, s42, 2              ; kh
s_lshl_b32 s46, s40, 18
s_lshl_b32 s58, s45, 14
s_add_u32 s58, s58, 65536
v_add_u32 v28, s58, v5
v_add_u32 v29, 65536, v28           ; slot U4
s_lshl_b32 s58, s42, 11
s_add_u32 s58, s58, {QX}
v_add_u32 v6, s58, v5
s_lshl_b32 s58, s44, 12
s_add_u32 s58, s58, {QX}
v_add_u32 v7, s58, v5
v_lshlrev_b32 v8, 7, v0
v_mov_b32 v{IDX}, 0xdddddddd
v_lshrrev_b32 v10, 3, v0
v_mul_u32_u24 v11, 896, v10
v_and_b32 v17, 7, v0
v_and_b32 v10, 2, v10
v_lshlrev_b32 v10, 1, v10
v_xor_b32 v17, v17, v10
v_lshl_add_u32 v30, v17, 4, v11""")
    for r in range(105, 128): e(f"v_mov_b32 v{r}, 0")
    if OPT["bar0"]: e("s_barrier")
    for f in ld_step(1): f()
    if OPT["dist"] == 3:
        for f in ld_step(2): f()
    if OPT["fine"] == 1: stamp(e, 4)
    at = []
    def atom(t, vm=None, nvm=0, lds=0):
        w = sum(1 for l in t.strip().split("\n") if l.strip() and not l.strip().startswith("s_"))
        at.append((w, t, vm, nvm, lds))
    lg = []
    def ride(budget):
        while at and budget > 0:
            w, t, vm, nvm, l = at.pop(0)
            e(t); budget -= w
            if vm: e.vmop(vm, nvm)
            lg.extend(["w"] * l)
    atom("v_mov_b32 v20, 0")
    for i in range(4):
        for l in f"""v_lshlrev_b32 v18, 16, v{96+i}
v_lshlrev_b32 v19, 16, v{100+i}
v_fmac_f32 v20, v18, v19
v_and_b32 v18, 0xffff0000, v{96+i}
v_and_b32 v19, 0xffff0000, v{100+i}
v_fmac_f32 v20, v18, v19""".split("\n"): atom(l)
    for k, m in enumerate(("row_shr:1", "row_shr:2", "row_shr:4", "row_shr:8")):
        atom(f"v_mov_b32 v{96+2*k}, 0\nv_mov_b32 v{97+2*k}, 0\nv_add_f32_dpp v20, v20, v20 {m} row_mask:0xf bank_mask:0xf bound_ctrl:0")
    atom(f"""v_readfirstlane_b32 s67, v104
v_mov_b32 v104, 0
v_readlane_b32 s60, v20, 15
v_readlane_b32 s61, v20, 31
v_readlane_b32 s62, v20, 47
v_readlane_b32 s63, v20, 63""")
    atom(f"""s_mul_i32 s67, s67, 0x41c64e6d
s_add_u32 s67, s67, 0x3039
v_mov_b32 v20, s60
v_add_f32 v20, s61, v20
v_add_f32 v20, s62, v20
v_add_f32 v20, s63, v20""")
    atom(f"""v_mul_f32 v20, {hex(f2u(-math.log2(math.e)))}, v20
v_exp_f32 v20, v20
s_lshl_b32 s55, s55, 3
v_add_f32 v20, 1.0, v20
v_rcp_f32 v18, v20
s_add_u32 s55, s55, {WS_G}
v_mov_b32 v20, s67
v_mov_b32 v19, s67""")
    atom(f"""s_lshr_b32 s62, s2, 3
s_mul_i32 s61, s62, 0x2493
s_lshr_b32 s61, s61, 16
s_mul_i32 s63, s61, 7
s_sub_u32 s62, s62, s63
s_mul_i32 s63, s42, {8*896}
s_lshl_b32 s64, s62, 7
s_add_u32 s63, s63, s64""")
    def wread(ks):
        b = WF + (ks % 2) * 8
        for p in range(2):
            off = (ks // 4) * 8192 + p * 4096 + (ks % 4) * 1024
            e(f"ds_read_b64_tr_b16 {vr(b+4*p, 2)}, v16 offset:{off}\nds_read_b64_tr_b16 {vr(b+4*p+2, 2)}, v16 offset:{off+256}")
    DI = OPT["dist"]
    wq = [(lambda t: lambda: load_wq(t))(t) for t in range(4)]
    for i in range(7):
        pend = ld_step(i + DI) if i + DI < 7 else wq
        place = {0: [2, 1, 1, 1], 1: [5, 0, 0, 0], 2: [0, 0, 0, 5], 3: [0, 1, 2, 2]}[OPT["place"]]
        if pend is wq: place = {0: [0, 0, 0, 2], 1: [0, 0, 0, 4], 2: [1, 1, 1, 1], 3: [0, 1, 0, 1], 4: [1, 0, 0, 0], 5: [1, 0, 1, 0] if i == 5 else [1, 0, 0, 0], 6: [1, 0, 1, 0]}[OPT["wqpl"]]
        if OPT["fine"] == 1 and i == 0:
            e.vmwait(("W", i)); stamp(e, 5)
        e.vmwait(("X", i), ("W", i))
        if OPT["fine"] == 1 and i == 0: stamp(e, 6)
        xb = XF + i * 16
        for ee in range(4):
            e(f"ds_read_b128 {vr(xb+4*ee, 4)}, v{(24 if i % 3 == 2 else 12)+ee} offset:{(i%3%2)*32768}")
        e("s_barrier")
        if OPT["fine"]:
            if i == 0 and OPT["fine"] == 1: stamp(e, 7, True)
            if OPT["fine"] == 2: stamp(e, i + 1, True)
        elif i in (0, 3): stamp(e, 1 + i//3, True)
        wread(4*i)
        for ee in range(4):
            ks = 4*i + ee
            if ee < 3:
                wread(ks+1); e("s_waitcnt lgkmcnt(4)")
            else:
                e("s_waitcnt lgkmcnt(0)")
            b = WF + (ks % 2) * 8
            x = vr(xb+4*ee, 4)
            z = ks == 0
            e(f"v_mfma_f32_32x32x16_bf16 {vr(AV,16)}, {x}, {vr(b+4,4)}, {'0' if z else vr(AV,16)}")
            e(f"v_mfma_f32_32x32x16_bf16 {vr(AK,16)}, {vr(b,4)}, {x}, {'0' if z else vr(AK,16)}")
            for _ in range(place[ee]):
                if pend: pend.pop(0)()
            if i >= 1: ride(4)
        assert pend is wq or not pend
    assert not at
    if not OPT["fine"]: stamp(e, 3)
    e(f"""s_mov_b64 exec, 1
buffer_store_dwordx2 v[18:19], v31, s[28:31], s55 offen sc1
s_mov_b64 exec, -1
s_nop 6""")
    e.vmop("kv", 1)
    for r in range(0, 8, 4):
        atom("s_mov_b32 exec_lo, 0x0fffffff\ns_mov_b32 exec_hi, 0x0fffffff\n" +
             "".join(f"v_cvt_pk_bf16_f32 v{SV+r+k}, v{AV+2*(r+k)}, v{AV+2*(r+k)+1}\n" for k in range(4)) + "s_mov_b64 exec, -1")
    def satom(i):
        if OPT["fine"] == 4 and STAMP: atom(f"s_memtime s[{68+4*i}:{69+4*i}]\ns_memrealtime s[{70+4*i}:{71+4*i}]")
    satom(2)
    atom(f"buffer_store_dwordx4 {vr(SV,4)}, v9, s[28:31], s59 offen offset:2048 sc1", "kv", 1)
    atom(f"buffer_store_dwordx4 {vr(SV+4,4)}, v9, s[28:31], s59 offen offset:3072 sc1", "kv", 1)
    satom(3)
    for r in range(8): atom(f"v_pk_mul_f32 {vr(AK+2*r,2)}, {vr(AK+2*r,2)}, s[100:101]")
    for r in range(6): atom(f"v_cvt_pk_bf16_f32 v{SK+r}, v{AK+2*r}, v{AK+2*r+1}")
    atom("s_mov_b32 exec_hi, 0\n" + "".join(f"v_cvt_pk_bf16_f32 v{SK+r}, v{AK+2*r}, v{AK+2*r+1}\n" for r in (6, 7)) + "s_mov_b64 exec, -1")
    satom(4)
    atom(f"buffer_store_dwordx4 {vr(SK,4)}, v21, s[28:31], s59 offen sc1", "kv", 1)
    atom(f"buffer_store_dwordx4 {vr(SK+4,4)}, v21, s[28:31], s59 offen offset:1024 sc1", "kv", 1)
    satom(5)
    while wq:
        n0 = len(e.L); v0 = len(e.vm); wq.pop(0)()
        atom("\n".join(e.L[n0:]), e.vm[-1], 1); del e.L[n0:]; del e.vm[v0:]
    atom(f"""s_lshl_b32 s47, s45, 14
s_lshl_b32 s48, s44, 10
s_add_u32 s47, s47, s48
s_add_u32 s49, s46, s47
s_cmp_lt_u32 s2, 224
s_cselect_b32 s22, {D*D*2}, 0
s_mov_b32 s20, s8
s_mov_b32 s21, s9
s_mov_b32 s24, s14
s_mov_b32 s25, s15
s_mov_b32 s26, s22""")
    for w in (f"ds_write_b128 v23, {vr(SK,4)}", f"ds_write_b128 v23, {vr(SK+4,4)} offset:1024",
              f"ds_write_b128 v22, {vr(SV,4)} offset:2048", f"ds_write_b128 v22, {vr(SV+4,4)} offset:3072"): atom(w, lds=1)
    def qread(ks):
        b = WF + (ks % 4) * 4
        e(f"ds_read_b64_tr_b16 {vr(b, 2)}, v16 offset:{ks*1024}\nds_read_b64_tr_b16 {vr(b+2, 2)}, v16 offset:{ks*1024+256}")
        lg.extend([ks, ks])
    def publish():
        e(f"""s_cmp_lg_u32 s42, 0
s_cbranch_scc1 L_nopub
s_lshl_b32 s53, s40, 3
s_add_u32 s53, s53, s41
s_lshl_b32 s53, s53, 7
s_add_u32 s53, s53, {WS_F1}
s_mov_b64 exec, 1
buffer_store_dword v20, v31, s[28:31], s53 offen sc1
s_mov_b64 exec, -1
L_nopub:""")
    G = OPT["qgrp"]
    if OPT["fine"] in (3, 4): stamp(e, 1)
    ride(OPT["ride0"])
    if OPT["fine"] == 4: stamp(e, 6, True)
    for t in range(0, 4, G):
        if OPT["fine"] == 3 and t == 2: stamp(e, 3)
        if t == OPT["pubt"]:
            assert not at
            e.vmwait(("Wq", t + G - 1), "kv")
        else: e.vmwait(("Wq", t + G - 1))
        if OPT["fine"] == 4 and t == 0: stamp(e, 7, True)
        e("s_barrier")
        if t == OPT["pubt"]:
            publish(); e.vm = [("Wq", 3)]
        if OPT["fine"] == 3: stamp(e, 2 + t, True)
        kss = list(range(8*t, min(8*(t+G), 28)))
        qread(kss[0]); qread(kss[1])
        for j, ks in enumerate(kss):
            if j + 2 < len(kss): qread(ks+2)
            e(f"s_waitcnt lgkmcnt({len(lg) - 1 - max(i for i, o in enumerate(lg) if o == ks)})")
            e(f"v_mfma_f32_32x32x16_bf16 {vr(AQ,16)}, {vr(WF+(ks%4)*4,4)}, {vr(XF+4*ks,4)}, {'0' if ks == 0 else vr(AQ,16)}")
            if ks < 27: ride(OPT["ride"])
    nrest = sum(a[0] for a in at)
    ride(1000)
    if nrest < 12: e(f"s_nop {11 - nrest}")
    if not OPT["fine"]: stamp(e, 4)
    for r in range(8): e(f"v_cvt_pk_bf16_f32 v{80+r}, v{AQ+2*r}, v{AQ+2*r+1}")
    e("s_mov_b32 exec_lo, 0\nv_mov_b32 v86, 0\nv_mov_b32 v87, 0\ns_mov_b64 exec, -1")
    e(f"ds_write_b128 v6, v[80:83]\nds_write_b128 v6, v[84:87] offset:1024")
    if OPT["fine"] == 3: stamp(e, 5)
    e("s_waitcnt vmcnt(0) lgkmcnt(0)" if OPT["pubt"] == 4 else "s_waitcnt lgkmcnt(0)")
    if OPT["fine"] == 3: stamp(e, 6)
    e("s_barrier")
    if OPT["fine"] == 3: stamp(e, 7, True)
    for i in range(4): e(f"ds_read_b128 {vr(Q[0]+4*i,4)}, v7 offset:{1024*i}")
    def dma1(c, u):
        if u == 0: e(f"s_add_u32 s50, s41, {c}\ns_and_b32 s50, s50, 7\ns_lshl_b32 s50, s50, 15\ns_add_u32 s50, s50, s49")
        e(f"""s_add_u32 m0, s47, {slot_base(c) + u*4096}
s_add_u32 s53, s50, {u*4096}
buffer_load_dwordx4 v5, s[28:31], s53 offen {"sc1 " if OPT["kvsc"] else ""}lds""")
        e.vmop(("KV", c, u))
    vq = []
    def dma(c): vq.extend([(lambda u: lambda: dma1(c, u))(u) for u in range(4)])
    def woq(*a): vq.append(lambda: wo(*a))
    def drip(k=1):
        for _ in range(k):
            if vq: vq.pop(0)()
    def wo(t, touch=None):
        r = "s[20:23]" if t < 7 else "s[24:27]"
        if touch is None:
            e(f"s_add_u32 m0, s51, {t*8192}\ns_add_u32 s53, s63, {(t%7)*64*896}\nbuffer_load_dwordx4 v30, {r}, s53 offen lds")
        else:
            e(f"s_add_u32 s53, s63, {(t%7)*64*896}\nbuffer_load_dwordx4 {vr(touch,4)}, v30, {r}, s53 offen")
        e.vmop("wo")
    def lds(t):
        c, u = t // 4, t % 4
        sb = slot_base(c)
        return ("v29", u*4096) if sb == 131072 else ("v28", sb - 65536 + u * 4096)
    def rdK(t):
        a, o = lds(t)
        e(f"ds_read_b128 {vr(KF[t%2],4)}, {a} offset:{o}\nds_read_b128 {vr(KF[t%2]+4,4)}, {a} offset:{o+1024}")
    def rdV(t):
        a, o = lds(t)
        e(f"ds_read_b128 {vr(VF[t%2],4)}, {a} offset:{o+2048}\nds_read_b128 {vr(VF[t%2]+4,4)}, {a} offset:{o+3072}")
    def Smm(n, i):
        t, a = n // 2, n % 2
        d = vr(X[n%4], 16)
        e(f"v_mfma_f32_32x32x16_bf16 {d}, {vr(KF[t%2]+4*i,4)}, {vr(Q[a]+4*i,4)}, {'0' if i == 0 else d}")
    def PV(n, i):
        t, a = n // 2, n % 2
        e(f"v_smfmac_f32_32x32x32_bf16 {vr(O[a],16)}, {vr(VF[t%2]+4*i,4)}, {vr(X[n%4]+8*i,8)}, v{IDX}")
    def ex(n, r0):
        for r in range(r0, r0+4): e(f"v_exp_f32 v{X[n%4]+r}, v{X[n%4]+r}")
    rdK(0)
    if OPT["pubt"] == 4: publish()
    e("s_waitcnt lgkmcnt(0)")
    Smm(0, 0); Smm(0, 1)
    e("s_nop 15")
    NT = 32
    for n in range(2*NT):
        t, a = n // 2, n % 2
        if a == 0:
            if t == OPT["pollt"]:
                e(f"s_lshl_b32 s53, s40, 10\ns_add_u32 s53, s53, {WS_F1}")
                poll(e, "L_poll1", "v8", "s53", 8)
                if not OPT["fine"]: stamp(e, 5)
                dma(1); drip(4); dma(2)
            if t % 4 == 3 and t + 1 < NT and not (OPT["diag"] & 2 and t > 4):
                c1 = (t + 1) // 4
                assert c1 == 1 or not vq
                e.vmwait(("KV", c1, 3))
                e("s_barrier")
                if c1 == 1 and not OPT["fine"]: stamp(e, 6)
                if 2 <= c1 < 7: dma(c1 + 1)
                if c1 <= 4: woq(2*c1 - 2); woq(2*c1 - 1)
                if c1 in (5, 6):
                    for k in range(3): woq(8 + 3*(c1-5) + k, 180 + 4*k)
                if c1 == 7:
                    for k in range(8, 12): woq(k)
                if OPT["drip"] == 0: drip(100)
                if OPT["prio"] == 1: e("s_setprio 0\ns_cmp_lt_u32 s42, 4\ns_cbranch_scc1 1\ns_setprio 1")
            if OPT["prio"] == 1 and t % 4 == 1 and t > 4: e("s_setprio 0")
            if OPT["prio"] == 2 and t > 2: e(f"s_setprio 0\ns_cmp_{'lt' if t % 2 else 'ge'}_u32 s42, 4\ns_cbranch_scc1 1\ns_setprio 1")
            if t == 20:
                e(f"""s_lshl_b32 s54, s42, 12
s_add_u32 s54, s54, 131072
v_add_u32 v6, s54, v5
s_xor_b32 s54, s54, 16384
v_add_u32 v7, s54, v5
s_lshl_b32 s52, s41, 3
s_lshl_b32 s53, s44, 1
s_add_u32 s52, s52, s53
s_add_u32 s52, s52, s45
s_lshl_b32 s52, s52, 5
s_add_u32 s52, s52, s40
s_lshl_b32 s55, s52, 11
s_add_u32 s55, s55, {WS_O}
s_and_b32 s52, s2, 7
s_lshl_b32 s52, s52, 3
s_lshl_b32 s53, s61, 1
s_add_u32 s52, s52, s53
s_and_b32 s53, s42, 1
s_add_u32 s52, s52, s53
s_lshl_b32 s59, s52, 2
s_lshr_b32 s53, s42, 1
s_add_u32 s59, s59, s53
s_lshl_b32 s59, s59, 14
s_add_u32 s59, s59, {WS_O}
s_and_b32 s53, s42, 2
s_lshl_b32 s53, s53, 10
s_sub_u32 s43, s59, s53
s_add_u32 s59, s59, s53
s_mov_b32 s48, 0xffff
v_mul_u32_u24 v17, 0x9e37, v0
v_xor_b32 v17, s67, v17
v_lshlrev_b32 v17, 16, v17
s_mov_b32 s56, {hex(f2u(2.0**-16))}
s_mov_b32 s57, {hex(f2u(2.0**64))}
s_mov_b32 s58, {hex(f2u(2.0**126))}""")
            if OPT["diag"] & 1 and t > 4: pass
            else:
                if t + 1 < NT: rdK(t+1)
                rdV(t)
        else:
            e("s_waitcnt lgkmcnt(0)")
        if n + 1 < 2*NT: Smm(n+1, 0)
        ex(n, 0)
        if n + 1 < 2*NT: Smm(n+1, 1)
        ex(n, 4)
        if OPT["drip"] >= 1: drip()
        if n > 0: PV(n-1, 0)
        ex(n, 8)
        if n > 0: PV(n-1, 1)
        ex(n, 12)
        if OPT["drip"] >= 2: drip()
    assert not vq
    e("s_setprio 0\ns_nop 0")
    PV(2*NT-1, 0); PV(2*NT-1, 1)
    if not OPT["fine"]: stamp(e, 7)
    stamp_flush(e, 0, 8); stamp(e, 0)
    A = X[0]
    e("s_barrier")
    wo(12); wo(13)
    e(f"""s_nop 3
s_cmp_eq_u32 s45, 0
s_cbranch_scc1 L_k0""")
    for k, lab in ((1, ""), (0, "L_k0:")):
        if lab: e(lab)
        for i in range(4): e(f"ds_write_b128 v6, {vr(O[1-k]+4*i,4)} offset:{1024*i}")
        e("s_waitcnt lgkmcnt(0)\ns_barrier")
        for i in range(4): e(f"ds_read_b128 {vr(X[1]+4*i,4)}, v7 offset:{1024*i}")
        for i in (3, 0, 1, 2):
            pass
        for i in range(4):
            e(f"s_waitcnt lgkmcnt({3-i})")
            for r in range(4*i, 4*i+4, 2): e(f"v_pk_add_f32 {vr(A+r,2)}, {vr(O[k]+r,2)}, {vr(X[1]+r,2)}")
        if k == 1: e("s_branch L_k1")
    e("L_k1:")
    L = A + 7
    e(f"""v_add_f32 v11, abs(v{A}), abs(v{A+1})
v_add_f32 v12, abs(v{A+2}), abs(v{A+3})""")
    for r in range(4, 16, 2): e(f"v_add_f32 v11, abs(v{A+r}), v11\nv_add_f32 v12, abs(v{A+r+1}), v12")
    e(f"""v_cmp_le_f32 s[64:65], s56, v{L}
v_add_f32 v11, v11, v12
v_cmp_ge_f32 vcc, s57, v{L}
s_and_b64 s[64:65], s[64:65], vcc
v_cmp_ge_f32 vcc, s58, v11
s_and_b64 s[64:65], s[64:65], vcc
s_cmp_eq_u64 s[64:65], exec
s_cbranch_scc0 L_fallback
L_fin:
v_rcp_f32 v10, v{L}
s_nop 0""")
    SO = 120
    for hf in range(2):
        for r in range(8*hf, 8*hf+8, 2): e(f"v_pk_mul_f32 {vr(A+r,2)}, {vr(A+r,2)}, v[10:11] op_sel_hi:[1,0]")
        for r in (4*hf+3, 4*hf, 4*hf+1, 4*hf+2): e(f"v_cvt_pk_bf16_f32 v{SO+r}, v{A+2*r}, v{A+2*r+1}")
        e(f"v_and_or_b32 v{SO+4*hf+3}, v{SO+4*hf+3}, s48, v17")
        e(f"buffer_store_dwordx4 {vr(SO+4*hf,4)}, v5, s[28:31], s55 offen offset:{1024*hf} sc1")
    e.vmop("o", 2)
    stamp(e, 1)
    e("s_cmp_ge_u32 s2, 224\ns_cbranch_scc1 L_end")
    OF = 64; AC = [32, 48]; WF = 128
    PERM = [1, 3, 5, 7, 0, 2, 4, 6]
    def oload(i):
        h = PERM[i]
        e(f"s_add_u32 s53, s{43 if h % 2 else 59}, {h*2048}")
        for f in range(2):
            e(f"buffer_load_dwordx4 {vr(OF+8*i+4*f,4)}, v5, s[28:31], s53 offen offset:{f*1024} sc1")
    for i in range(8):
        oload(i); e.vmop(("of", i), 2)
    srd(e, 32, 18, S*D*2)
    e(f"""v_and_b32 v6, 31, v0
v_lshlrev_b32 v7, 3, v6
s_lshl_b32 s47, s52, 8
s_add_u32 s47, s47, {WS_G}
buffer_load_dwordx2 v[22:23], v7, s[28:31], s47 offen sc1""")
    e.vmop("g")
    stamp(e, 2)
    e(f"""s_and_b32 s44, s42, 1               ; ri
s_lshr_b32 s45, s42, 1              ; kq
s_mov_b32 s46, s52
v_lshrrev_b32 v18, 5, v0            ; h
v_lshrrev_b32 v9, 2, v0
v_and_b32 v9, 3, v9                 ; r
v_lshl_add_u32 v10, v18, 2, v9      ; row 4h + r
v_min_u32 v9, 2, v9
v_mad_u32_u24 v12, v18, 3, v9
v_lshrrev_b32 v9, 4, v0
v_and_b32 v9, 1, v9
v_and_b32 v11, 3, v0
v_lshl_add_u32 v9, v9, 2, v11
s_mul_i32 s54, s45, 28672
s_and_b32 s53, s45, 1
s_mul_i32 s53, s53, {28*128}
s_add_u32 s54, s54, s53
s_lshl_b32 s53, s53, 1
v_lshl_add_u32 v9, v9, 3, s54""")
    for r in (10, 12):
        e(f"""v_and_b32 v11, 2, v{r}
v_lshl_add_u32 v{r}, v{r}, 7, v9
v_lshl_add_u32 v{r}, v11, 5, v{r}
v_xor_b32 v{r+1}, 64, v{r}""")
    for r in range(4): e(f"v_subrev_u32 v{24+r}, s53, v{10+r}")
    for r in range(32): e(f"v_mov_b32 v{AC[0]+r}, 0")
    e.vmwait("wo")
    e(f"s_barrier\ns_mov_b32 s49, 0xff\ns_mov_b32 s60, {SPIN}")
    def wread3(i):
        h = PERM[i]; ab = 24 if h % 2 else 10
        for f in range(2):
            b = WF + 16*i + 8*f; k0 = 28*h + 14*f
            for ci in range(2):
                e(f"ds_read_b64_tr_b16 {vr(b+4*ci,2)}, v{ab+(ci^f)} offset:{k0*128}\nds_read_b64_tr_b16 {vr(b+4*ci+2,2)}, v{ab+2+(ci^f)} offset:{(k0+8)*128}")
    def take(i, lab):
        e(f"""v_xor_b32 v{OF+8*i+3}, v17, v{OF+8*i+3}
v_xor_b32 v{OF+8*i+7}, v17, v{OF+8*i+7}
v_max_u32 v9, v{OF+8*i+3}, v{OF+8*i+7}
v_cmp_le_u32 vcc, 0x10000, v9
s_cbranch_vccnz {lab}
s_bitset0_b32 s49, {i}""")
        for f in range(2):
            for ci in range(2):
                e(f"v_mfma_f32_32x32x16_bf16 {vr(AC[ci],16)}, {vr(WF+16*i+8*f+4*ci,4)}, {vr(OF+8*i+4*f,4)}, {vr(AC[ci],16)}")
        e(f"{lab}:")
    wread3(0)
    for i in range(8):
        if i < 7:
            wread3(i+1); e("s_waitcnt lgkmcnt(8)")
        else: e("s_waitcnt lgkmcnt(0)")
        e.vmwait(("of", i))
        take(i, f"L_t{i}")
    stamp(e, 3)
    e("""L_round:
s_cmp_eq_u32 s49, 0
s_cbranch_scc1 L_gpoll
s_sub_u32 s60, s60, 1
s_cbranch_scc1 L_gpoll""")
    for i in range(8):
        e(f"s_bitcmp1_b32 s49, {i}\ns_cbranch_scc0 L_l{i}")
        oload(i)
        e(f"L_l{i}:")
    e("s_waitcnt vmcnt(0)")
    for i in range(8):
        e(f"s_bitcmp1_b32 s49, {i}\ns_cbranch_scc0 L_u{i}")
        take(i, f"L_u{i}")
    e(f"""s_branch L_round
L_gagain:
buffer_load_dwordx2 v[22:23], v7, s[28:31], s47 offen sc1
s_sub_u32 s60, s60, 1
s_cbranch_scc1 L_gdone
L_gpoll:
s_waitcnt vmcnt(0)
v_cmp_ne_u32 vcc, s67, v23
s_cbranch_vccnz L_gagain
L_gdone:""")
    stamp(e, 4)
    RB = 114688
    e(f"""s_waitcnt vmcnt(0)
v_sub_f32 v13, 1.0, v22
s_cmp_ge_u32 s42, 4
s_cselect_b64 vcc, -1, 0
s_mul_i32 s54, s44, 24576
s_add_u32 s54, s54, {RB}
v_add_u32 v14, s54, v5
s_mul_i32 s55, s45, 6144
v_cndmask_b32 v12, v22, v13, vcc
v_add_u32 v16, s55, v14
v_mul_u32_u24 v15, 896, v6
v_lshl_add_u32 v15, v18, 4, v15
s_mul_i32 s54, s46, {32*896}
s_lshl_b32 s55, s62, 7
s_add_u32 s54, s54, s55
s_lshl_b32 s55, s45, 5
s_add_u32 s54, s54, s55
s_cmp_eq_u32 s45, 1
s_cbranch_scc1 L_r1
s_cmp_eq_u32 s45, 2
s_cbranch_scc1 L_r2
s_cmp_eq_u32 s45, 3
s_cbranch_scc1 L_r3""")
    for kq in range(4):
        e(f"L_r{kq}:")
        for pi in [p for p in range(4) if p != kq] + [kq]:
            for r in range(0, 8, 2):
                e(f"v_pk_mul_f32 {vr((64 if pi == kq else 32+8*pi)+r,2)}, {vr(32+8*pi+r,2)}, v[12:13] op_sel_hi:[1,0]")
            if pi != kq:
                o = pi*6144 + ((kq - pi - 1) % 4)*2048
                e(f"ds_write_b128 v14, {vr(32+8*pi,4)} offset:{o}\nds_write_b128 v14, {vr(36+8*pi,4)} offset:{o+1024}")
        if kq < 3: e("s_branch L_rd")
    e("L_rd:\ns_waitcnt lgkmcnt(0)\ns_barrier")
    for q in range(3):
        e(f"ds_read_b128 {vr(72+8*q,4)}, v16 offset:{q*2048}\nds_read_b128 {vr(76+8*q,4)}, v16 offset:{q*2048+1024}")
    for q in range(3):
        e(f"s_waitcnt lgkmcnt({4-2*q})")
        for r in range(0, 8, 2): e(f"v_pk_add_f32 {vr(64+r,2)}, {vr(64+r,2)}, {vr(72+8*q+r,2)}")
    for r in range(4): e(f"v_cvt_pk_bf16_f32 v{96+r}, v{64+2*r}, v{64+2*r+1}")
    e(f"""s_nop 1
v_permlane32_swap_b32 v96, v98
v_permlane32_swap_b32 v97, v99
buffer_store_dwordx4 v[96:99], v15, s[32:35], s54 offen{["", " sc1", " nt", " sc0 sc1"][OPT["outsc"]]}""")
    stamp(e, 5)
    if STAMP: e("s_waitcnt vmcnt(0)")
    stamp(e, 6); stamp_flush(e, 1, 7)
    e(f"""s_or_b32 s53, s2, s42
s_cmp_lg_u32 s53, 0
s_cbranch_scc1 L_end
s_mov_b32 s53, {WS_E}
s_mov_b64 exec, 1
buffer_store_dword v20, v31, s[28:31], s53 offen sc1
L_end:
s_endpgm""")
    Sx, M = X[1], X[2]
    e("L_fallback:\ns_cmp_eq_u32 s45, 0\ns_cbranch_scc1 L_fb0")
    for r in range(8): e(f"v_mov_b32 v{Q[0]+r}, v{Q[1]+r}")
    e(f"""L_fb0:
v_mov_b32 v10, 0xff800000
s_mov_b32 s56, s46
s_add_u32 s57, s46, 262144
L_fb1:
buffer_load_dwordx4 {vr(KF[0],4)}, v5, s[28:31], s56 offen sc1
buffer_load_dwordx4 {vr(KF[0]+4,4)}, v5, s[28:31], s56 offen offset:1024 sc1
s_waitcnt vmcnt(0)
v_mfma_f32_32x32x16_bf16 {vr(Sx,16)}, {vr(KF[0],4)}, {vr(Q[0],4)}, 0
v_mfma_f32_32x32x16_bf16 {vr(Sx,16)}, {vr(KF[0]+4,4)}, {vr(Q[0]+4,4)}, {vr(Sx,16)}
s_nop 15""")
    for r in range(0, 16, 2): e(f"v_max3_f32 v10, v{Sx+r}, v{Sx+r+1}, v10")
    e(f"""s_add_u32 s56, s56, 4096
s_cmp_lt_u32 s56, s57
s_cbranch_scc1 L_fb1
v_mov_b32 v11, v10
s_nop 1
v_permlane32_swap_b32 v10, v11
s_nop 1
v_max_f32 v10, v10, v11""")
    for r in range(16): e(f"v_sub_f32 v{M+r}, 0, v10\nv_mov_b32 v{A+r}, 0")
    e(f"""s_mov_b32 s56, s46
L_fb2:
buffer_load_dwordx4 {vr(KF[0],4)}, v5, s[28:31], s56 offen sc1
buffer_load_dwordx4 {vr(KF[0]+4,4)}, v5, s[28:31], s56 offen offset:1024 sc1
buffer_load_dwordx4 {vr(VF[0],4)}, v5, s[28:31], s56 offen offset:2048 sc1
buffer_load_dwordx4 {vr(VF[0]+4,4)}, v5, s[28:31], s56 offen offset:3072 sc1
s_waitcnt vmcnt(0)
v_mfma_f32_32x32x16_bf16 {vr(Sx,16)}, {vr(KF[0],4)}, {vr(Q[0],4)}, {vr(M,16)}
v_mfma_f32_32x32x16_bf16 {vr(Sx,16)}, {vr(KF[0]+4,4)}, {vr(Q[0]+4,4)}, {vr(Sx,16)}
s_nop 15""")
    for r in range(16): e(f"v_exp_f32 v{Sx+r}, v{Sx+r}")
    e(f"""s_nop 1
v_smfmac_f32_32x32x32_bf16 {vr(A,16)}, {vr(VF[0],4)}, {vr(Sx,8)}, v{IDX}
v_smfmac_f32_32x32x32_bf16 {vr(A,16)}, {vr(VF[0]+4,4)}, {vr(Sx+8,8)}, v{IDX}
s_add_u32 s56, s56, 4096
s_cmp_lt_u32 s56, s57
s_cbranch_scc1 L_fb2
s_nop 15
s_branch L_fin""")

def main(out):
    e = E()
    hdr = open("cdna_kernels/" + NAME + ".s.ref").read().split("; Override launch")[0]
    e.L.append(hdr.rstrip("\n"))
    e.L.append(f"; @launch grid=(256,1,1) block=(512,1,1) lds={LDS}")
    e('.amdgcn_target "amdgcn-amd-amdhsa--gfx950"\n.text')
    kn = NAME + "_kernel"
    kernel(e, kn)
    t = e.text() + f""".section .rodata,"a"
.p2align 6
.amdhsa_kernel {kn}
  .amdhsa_next_free_vgpr 256
  .amdhsa_next_free_sgpr 102
  .amdhsa_accum_offset 256
  .amdhsa_group_segment_fixed_size 0
  .amdhsa_kernarg_size 80
  .amdhsa_user_sgpr_count 2
  .amdhsa_user_sgpr_kernarg_segment_ptr 1
  .amdhsa_system_sgpr_workgroup_id_x 1
  .amdhsa_float_denorm_mode_32 3
.end_amdhsa_kernel
"""
    open(out, "w").write(t)
if __name__ == "__main__":
    args = sys.argv[1:]
    if "--stamp" in args: STAMP = True; args.remove("--stamp")
    for a in list(args):
        if "=" in a:
            k, v = a.split("="); OPT[k] = int(v); args.remove(a)
    main(args[0] if args else "cdna_kernels/" + NAME + ".s")
```
